```python
import torch

def _softmax(x, axis=-1):
    return torch.softmax(x, dim=axis)
def _gelu(x):
    return torch.nn.functional.gelu(x, approximate="tanh")
def _silu(x):
    return torch.nn.functional.silu(x)
def _sigmoid(x):
    return torch.sigmoid(x)
def _layernorm(x, axis=-1, eps=1e-5):
    m = x.mean(dim=axis, keepdim=True)
    v = x.var(dim=axis, keepdim=True, unbiased=False)
    return (x - m) / torch.sqrt(v + eps)
def _scatter_add(tgt, idx, src, axis=0):
    return tgt.clone().index_add_(axis, idx, src)
def _segment_sum(src, seg, n):
    out = torch.zeros((n,) + src.shape[1:], dtype=src.dtype)
    return out.index_add_(0, seg, src)
def _pad(x, pw):
    flat = tuple(v for pair in reversed(pw) for v in pair)
    return torch.nn.functional.pad(x, flat)

kernel_name = 'standalone__hybrid_graph_tf_exphormer__graph'

def setup_inputs():

    _w = (lambda a: (lambda t: t.to(torch.bfloat16) if t.is_floating_point() else t)(torch.as_tensor(a)))
    N, deg, D = 50000, 16, 64
    E = N * deg
    exp_deg = 4
    Ee = N * exp_deg
    src = (lambda lo, hi, *s: torch.randint(lo, hi, s))(0, N, E).to(torch.int64)
    dst = (lambda lo, hi, *s: torch.randint(lo, hi, s))(0, N, E).to(torch.int64)
    esrc = (lambda lo, hi, *s: torch.randint(lo, hi, s))(0, N, Ee).to(torch.int64)
    edst = torch.repeat_interleave(torch.arange(N), exp_deg).to(torch.int64)
    deg_cnt = torch.bincount(dst, minlength=N).to(float) + 1.0
    return {
        "x": _w((lambda *s: torch.randn(*s, dtype=torch.bfloat16) * 0.05)(N, D)),
        "src": _w(src),
        "dst": _w(dst),
        "esrc": _w(esrc),
        "edst": _w(edst),
        "deg_inv_sqrt": _w(1.0 / (lambda _x: torch.sqrt(torch.as_tensor(_x)))(deg_cnt)),
        "w_l": _w((lambda *s: torch.randn(*s, dtype=torch.bfloat16) * 0.05)(D, D)),
        "wq": _w((lambda *s: torch.randn(*s, dtype=torch.bfloat16) * 0.05)(D, D)),
        "wk": _w((lambda *s: torch.randn(*s, dtype=torch.bfloat16) * 0.05)(D, D)),
        "wv": _w((lambda *s: torch.randn(*s, dtype=torch.bfloat16) * 0.05)(D, D)),
    }

def reference(x, src, dst, esrc, edst, deg_inv_sqrt, w_l, wq, wk, wv):
    N, D = x.shape
    h = x @ w_l
    msg = h[src] * deg_inv_sqrt[src, None] * deg_inv_sqrt[dst, None]
    h_local = _segment_sum(msg, dst, N)
    q = x @ wq
    k = x @ wk
    v = x @ wv
    e = (q[edst] * k[esrc]).sum(-1) * (D ** -0.5)
    exp_e = torch.exp(e)
    denom = _segment_sum(exp_e[:, None], edst, N)[:, 0] + 1e-9
    alpha = exp_e / denom[edst]
    h_attn = _segment_sum(alpha[:, None] * v[esrc], edst, N)
    return h_local + h_attn
```

```python
import re

class Asm:
    def __init__(self):
        self.lines = []
        self.uid = 0
    def __call__(self, s=""):
        for ln in s.split("\n"):
            ln = ln.rstrip()
            if ln.strip() == "":
                continue
            self.lines.append(ln if ln.endswith(":") or ln.startswith(".") or ln.startswith(";") else "    " + ln.strip())
    def c(self, s):
        self.lines.append("    ; " + s)
    def label(self, name):
        self.lines.append(name + ":")
    def newlabel(self, p="L"):
        self.uid += 1
        return "%s_%d" % (p, self.uid)
    def text(self):
        return "\n".join(self.lines) + "\n"

REG = re.compile(r"(?<![\w.])([vsa])(\d+)(?![\w\[])|(?<![\w.])([vsa])\[(\d+):(\d+)\]|(?<![\w.])(vcc|exec|m0)(?![\w])")
TRANS = ("v_exp_f32", "v_log_f32", "v_rcp_f32", "v_rsq_f32", "v_sqrt_f32", "v_sin_f32", "v_cos_f32", "v_rcp_iflag_f32")

def regs_of(tok):
    out = set()
    for m in REG.finditer(tok):
        if m.group(1):
            out.add((m.group(1), int(m.group(2))))
        elif m.group(3):
            for i in range(int(m.group(4)), int(m.group(5)) + 1):
                out.add((m.group(3), i))
        else:
            out.add((m.group(6), 0))
    return out

def split_ops(rest):
    ops, depth, cur = [], 0, ""
    for ch in rest:
        if ch in "[(":
            depth += 1
        elif ch in "])":
            depth -= 1
        if ch == "," and depth == 0:
            ops.append(cur.strip()); cur = ""
        else:
            cur += ch
    if cur.strip():
        ops.append(cur.strip())
    return ops

def parse(line):
    s = line.split(";")[0].strip()
    if not s or s.endswith(":") or s.startswith("."):
        return None
    parts = s.split(None, 1)
    mn = parts[0]
    rest = parts[1] if len(parts) > 1 else ""
    ops = split_ops(rest)
    return mn, ops, s

def classify(mn, ops, s):
    mn0 = re.sub(r"_(e32|e64|dpp|sdwa)$", "", mn)
    w, r = set(), set()
    kind = "other"
    first = ops[0].split()[0] if ops else ""
    if mn.startswith("v_"):
        kind = "valu"
        if mn.startswith("v_mfma"):
            kind = "mfma"
            w |= regs_of(ops[0]);
            for o in ops[1:]: r |= regs_of(o)
        elif mn0.startswith("v_cmp"):
            w |= regs_of(ops[0])
            for o in ops[1:]: r |= regs_of(o.split()[0])
            if mn0.startswith("v_cmpx"): w.add(("exec", 0))
        elif mn0 in ("v_readfirstlane_b32", "v_readlane_b32"):
            w |= regs_of(ops[0])
            for o in ops[1:]: r |= regs_of(o.split()[0])
        elif mn0 in ("v_add_co_u32", "v_sub_co_u32", "v_addc_co_u32", "v_subb_co_u32", "v_subrev_co_u32"):
            w |= regs_of(ops[0]) | regs_of(ops[1])
            for o in ops[2:]: r |= regs_of(o.split()[0])
        else:
            w |= regs_of(first)
            for o in ops[1:]: r |= regs_of(o.split()[0])
            if mn0 in ("v_fmac_f32", "v_dot2c_f32_bf16", "v_mac_f32") or mn0.startswith("v_permlane"):
                r |= regs_of(first)
            if mn0.startswith("v_permlane"):
                w |= regs_of(ops[1])
            if mn0 == "v_cndmask_b32" and len(ops) == 3:
                r.add(("vcc", 0))
            if mn0 == "v_writelane_b32":
                r |= regs_of(first)
            if "sdwa" in mn and "UNUSED_PRESERVE" in s:
                r |= regs_of(first)
    elif mn.startswith("s_"):
        kind = "salu"
        if mn.startswith(("s_waitcnt", "s_nop", "s_barrier", "s_branch", "s_cbranch", "s_endpgm", "s_setprio", "s_sleep")):
            kind = "ctl"
        elif mn.startswith("s_cmp") or mn.startswith("s_bitcmp"):
            for o in ops: r |= regs_of(o)
        elif mn.startswith("s_load") or mn.startswith("s_buffer_load"):
            kind = "smem"
            w |= regs_of(ops[0])
            for o in ops[1:]: r |= regs_of(o)
        else:
            w |= regs_of(first)
            for o in ops[1:]: r |= regs_of(o)
            if "saveexec" in mn:
                w.add(("exec", 0)); r.add(("exec", 0))
    elif mn.startswith(("buffer_", "global_", "flat_")):
        kind = "vmem"
        isload = "load" in mn and " lds" not in (" " + s) and "load_lds" not in mn
        isatomret = "atomic" in mn and " sc0" in s
        if isload:
            w |= regs_of(ops[0])
            for o in ops[1:]: r |= regs_of(o.split()[0])
        else:
            for o in ops: r |= regs_of(o.split()[0])
            if isatomret: w |= regs_of(ops[0])
    elif mn.startswith("ds_"):
        kind = "ds"
        if mn.startswith(("ds_read", "ds_bpermute", "ds_permute", "ds_swizzle")) or "_rtn" in mn:
            w |= regs_of(ops[0])
            for o in ops[1:]: r |= regs_of(o.split()[0])
        else:
            for o in ops: r |= regs_of(o.split()[0])
    return dict(kind=kind, w=w, r=r, mn=mn, mn0=mn0, s=s)

def lint(text, verbose=True):
    ins = []
    for ln_no, line in enumerate(text.split("\n"), 1):
        p = parse(line)
        if p is None:
            continue
        d = classify(*p)
        d["ln"] = ln_no
        ins.append(d)
    problems = []
    def states(d):
        if d["mn"] == "s_nop":
            return int(d["s"].split()[1], 0) + 1
        return 1
    n = len(ins)
    for i, a in enumerate(ins):
        dist = 0
        for j in range(i + 1, min(n, i + 40)):
            b = ins[j]
            need = 0; why = ""
            isv = lambda rs: {x for x in rs if x[0] in ("v", "a")}
            iss = lambda rs: {x for x in rs if x[0] in ("s", "vcc")}
            if a["kind"] == "valu":
                vw = isv(a["w"]); sw = iss(a["w"])
                if vw & b["r"]:
                    if b["kind"] == "valu" and ("dpp" in b["mn"] or "quad_perm" in b["s"] or "row_" in b["s"]):
                        need, why = 2, "VALU->DPP"
                    if b["kind"] == "mfma":
                        need, why = 2, "VALU->MFMA"
                    if b["mn0"] in ("v_readfirstlane_b32", "v_readlane_b32"):
                        need, why = max(need, 1), "VALU->readlane"
                    if b["mn0"].startswith("v_permlane"):
                        need, why = 2, "VALU->permlane"
                    if a["mn0"] in TRANS and b["kind"] == "valu" and b["mn0"] not in TRANS:
                        need, why = max(need, 1), "trans->VALU"
                    if ("sdwa" in a["mn"] and "dst_sel:DWORD" not in a["s"] and "dst_sel" in a["s"]) and b["kind"] in ("valu",):
                        need, why = max(need, 1), "SDWA dst->VALU"
                if sw & b["r"]:
                    if b["kind"] == "valu":
                        if b["mn0"] in ("v_readlane_b32", "v_writelane_b32"):
                            need, why = 4, "VALU sgpr->lane select (conservative)"
                        else:
                            need, why = 2, "VALU sgpr->VALU const"
                    if b["kind"] == "vmem":
                        need, why = 5, "VALU sgpr->VMEM"
                if ("exec", 0) in a["w"] and b["kind"] == "valu" and "dpp" in b["mn"]:
                    need, why = 5, "VALU exec->DPP"
            if a["kind"] == "mfma":
                d = isv(a["w"])
                if b["kind"] == "mfma":
                    ab = set()
                    ops = split_ops(b["s"].split(None, 1)[1])
                    ab |= regs_of(ops[1]) | regs_of(ops[2])
                    cc = regs_of(ops[3])
                    if d & ab:
                        need, why = 8, "MFMA D->MFMA A/B"
                    elif d & cc and d != cc:
                        need, why = 6, "MFMA D->MFMA C partial"
                elif b["kind"] in ("valu", "vmem", "ds") and (d & (b["r"] | b["w"])):
                    need, why = 8, "MFMA D->VALU/mem"
                ops = split_ops(a["s"].split(None, 1)[1])
                cc = isv(regs_of(ops[3]))
                if b["kind"] == "valu" and (cc & b["w"]) and need < 3:
                    need, why = 3, "MFMA C WAR"
            if a["kind"] == "vmem" and re.search(r"store_dwordx[34]|atomic_cmpswap_x2", a["mn"]):
                ops = split_ops(a["s"].split(None, 1)[1])
                data = regs_of(ops[0]) if a["mn"].startswith("buffer") else regs_of(ops[1])
                if b["kind"] == "valu" and (isv(data) & b["w"]):
                    need, why = 2, "store x4 data WAR"
            if a["kind"] == "salu" and ("m0", 0) in a["w"] and b["kind"] == "vmem" and ("lds" in b["s"]):
                need, why = 1, "M0->LDS DMA"
            if need > dist:
                problems.append((a["ln"], b["ln"], why, need, dist, a["s"], b["s"]))
            dist += states(b)
            if dist >= 12:
                break
            if b["mn"] in ("s_endpgm", "s_branch"):
                break
    if verbose:
        for p in problems:
            print("HAZARD %s: line %d -> %d need %d have %d\n    %s\n    %s" % (p[2], p[0], p[1], p[3], p[4], p[5], p[6]))
    return problems
```

```python
import sys
from asmlib import Asm, lint

N = 50000
BS = 196
NB = 256
CHUNK = 3125
H = 25000
CAP = 40
SENT = 50000
WS_SLOTS = 0
WS_OVF = 8388608
OVF_STRIDE = 12544
WS_HDR = 12 * 1024 * 1024
WS_SPILL = 16 * 1024 * 1024
WS_USED = 24 * 1024 * 1024
L_LISTS = 0
L_CNT = 15872
L_FLAG = L_CNT + 1020
L_Y = 16896
L_WL = 42240
L_WV = 51456
L_MISC = 60672
L_DINV = 63488
L_WQ = L_DINV + 81920
L_WK = L_WQ + 9216
L_TOTAL_B = 163840
A_STG = 0
A_CNT = 40960
A_OVFCNT = 41984
L_TOTAL_A = 98304

KA = "exph_bin_kernel"
KB = "exph_main_kernel"

def header(a):
    a.lines.append("; Exphormer graph layer: kernel 1 bins the local edges by destination bucket, kernel 2 aggregates + attention + projection")
    a.lines.append("; @launch kernel=%s grid=(256,1,1) block=(1024,1,1) lds=%d" % (KA, L_TOTAL_A))
    a.lines.append("; @launch kernel=%s grid=(256,1,1) block=(1024,1,1) lds=%d" % (KB, L_TOTAL_B))
    a('.amdgcn_target "amdgcn-amd-amdhsa--gfx950"')
    a(".text")

def kstart(a, name):
    a(".globl %s" % name)
    a(".p2align 8")
    a(".type %s,@function" % name)
    a.label(name)

def kdesc(a, name, vg, sg):
    a(".amdhsa_kernel %s" % name)
    a("  .amdhsa_next_free_vgpr %d" % vg)
    a("  .amdhsa_next_free_sgpr %d" % sg)
    a("  .amdhsa_accum_offset %d" % vg)
    a("  .amdhsa_group_segment_fixed_size 0")
    a("  .amdhsa_kernarg_size 104")
    a("  .amdhsa_user_sgpr_count 2")
    a("  .amdhsa_user_sgpr_kernarg_segment_ptr 1")
    a("  .amdhsa_system_sgpr_workgroup_id_x 1")
    a(".end_amdhsa_kernel")

def srd(a, s, lo, hi, nrec, stride=0):
    a("s_mov_b32 s%d, s%d" % (s, lo))
    if stride:
        a("s_and_b32 s%d, s%d, 0xffff" % (s + 1, hi))
        a("s_or_b32 s%d, s%d, 0x%x" % (s + 1, s + 1, stride << 16))
    else:
        a("s_and_b32 s%d, s%d, 0xffff" % (s + 1, hi))
    a("s_mov_b32 s%d, %d" % (s + 2, nrec))
    a("s_mov_b32 s%d, 0x20000" % (s + 3))

def load_kernargs(a):
    a("s_load_dwordx16 s[4:19], s[0:1], 0")
    a("s_load_dwordx8 s[20:27], s[0:1], 64")
    a("s_load_dwordx2 s[28:29], s[0:1], 96")

def gen_A(a):
    kstart(a, KA)
    end = "A_END"
    a("s_cmp_ge_u32 s2, %d" % NB)
    a("s_cbranch_scc1 %s" % end)
    load_kernargs(a)
    vOff, vOne, v64k, v31, vZ = 1, 2, 3, 4, 5
    vD = [8, 9, 10, 11]; vS = [12, 13, 14, 15]
    vB = [16, 17, 18, 19]; vR = [20, 21, 22, 23]; vO = [24, 25, 26, 27]
    t0, t1, t2, t3 = 28, 29, 30, 31
    a("v_lshlrev_b32 v%d, 2, v0" % vOff)
    a("v_readfirstlane_b32 s3, v0")
    a("v_mov_b32 v%d, 1" % vOne)
    a("v_mov_b32 v%d, 0x10000" % v64k)
    a("v_mov_b32 v%d, 31" % v31)
    a("v_mov_b32 v%d, 0" % vZ)
    a("s_lshr_b32 s3, s3, 6")
    a.c("staging sentinel fill (40960 B) and counters")
    a("v_mov_b32 v32, 0x00ffffff\nv_mov_b32 v33, 0x00ffffff\nv_mov_b32 v34, 0x00ffffff\nv_mov_b32 v35, 0x00ffffff")
    a("v_lshlrev_b32 v%d, 4, v0" % t0)
    a("ds_write_b128 v%d, v[32:35] offset:%d" % (t0, A_STG))
    a("ds_write_b128 v%d, v[32:35] offset:%d" % (t0, A_STG + 16384))
    a("v_cmp_gt_u32 vcc, 512, v0")
    a("s_and_saveexec_b64 s[30:31], vcc")
    a("ds_write_b128 v%d, v[32:35] offset:%d" % (t0, A_STG + 32768))
    a("s_mov_b64 exec, s[30:31]")
    a("v_cmp_gt_u32 vcc, 257, v0")
    a("s_and_saveexec_b64 s[30:31], vcc")
    a("ds_write_b32 v%d, v%d offset:%d" % (vOff, vZ, A_CNT))
    a("s_mov_b64 exec, s[30:31]")
    a("s_waitcnt lgkmcnt(0)")
    srd(a, 32, 6, 7, 3200000)
    srd(a, 36, 8, 9, 3200000)
    srd(a, 40, 28, 29, WS_USED)
    a("s_mul_i32 s44, s2, %d" % (CHUNK * 4))
    a("s_add_u32 s45, s44, 4096\ns_add_u32 s46, s44, 8192\ns_add_u32 s47, s44, 12288")
    for k in range(3):
        a("buffer_load_dword v%d, v%d, s[36:39], s%d offen" % (vD[k], vOff, 44 + k))
        a("buffer_load_dword v%d, v%d, s[32:35], s%d offen" % (vS[k], vOff, 44 + k))
    a.c("4th element: only wave 0, lanes < 53")
    a("s_mov_b64 s[48:49], 0")
    a("s_cmp_lg_u32 s3, 0")
    a("s_cbranch_scc1 A_NO4")
    a("v_cmp_gt_u32 vcc, %d, v0" % (CHUNK - 3072))
    a("s_mov_b64 s[48:49], vcc")
    a("s_mov_b64 exec, vcc")
    a("buffer_load_dword v%d, v%d, s[36:39], s47 offen" % (vD[3], vOff))
    a("buffer_load_dword v%d, v%d, s[32:35], s47 offen" % (vS[3], vOff))
    a("s_mov_b64 exec, -1")
    a.label("A_NO4")
    a("s_mov_b32 s50, 85599\ns_mov_b32 s51, -%d\ns_mov_b32 s52, %d" % (BS, H))
    a("s_barrier")
    def front(k):
        a("v_mul_u32_u24 v%d, s50, v%d" % (t0, vD[k]))
        a("v_cmp_le_u32 s[%d:%d], s52, v%d" % (56 + 2 * k, 57 + 2 * k, vS[k]))
        a("v_lshrrev_b32 v%d, 24, v%d" % (vB[k], t0))
        a("v_mad_i32_i24 v%d, v%d, s51, v%d" % (t1, vB[k], vD[k]))
        a("v_cndmask_b32 v%d, v%d, v%d, s[%d:%d]" % (t2, vOne, v64k, 56 + 2 * k, 57 + 2 * k))
        a("v_lshl_or_b32 v%d, v%d, 16, v%d" % (vR[k], t1, vS[k]))
        a("v_lshlrev_b32 v%d, 2, v%d" % (t3, vB[k]))
        a("ds_add_rtn_u32 v%d, v%d, v%d offset:%d" % (vO[k], t3, t2, A_CNT))
    def back(k, lbl):
        a("v_add_u32_sdwa v%d, v%d, v%d dst_sel:DWORD dst_unused:UNUSED_PAD src0_sel:WORD_0 src1_sel:WORD_1" % (t0, vO[k], vO[k]))
        a("v_sub_u32_sdwa v%d, v%d, v%d dst_sel:DWORD dst_unused:UNUSED_PAD src0_sel:DWORD src1_sel:WORD_1" % (t1, v31, vO[k]))
        a("v_and_b32 v%d, 0xffff, v%d" % (t2, vO[k]))
        a("v_cmp_gt_u32 vcc, 32, v%d" % t0)
        a("v_cndmask_b32 v%d, v%d, v%d, s[%d:%d]" % (t2, t2, t1, 56 + 2 * k, 57 + 2 * k))
        a("v_mul_u32_u24 v%d, 160, v%d" % (t3, vB[k]))
        a("v_lshl_add_u32 v%d, v%d, 2, v%d" % (t3, t2, t3))
        a("s_andn2_b64 s[64:65], exec, vcc")
        a("s_and_saveexec_b64 s[66:67], vcc")
        a("ds_write_b32 v%d, v%d offset:%d" % (t3, vR[k], A_STG))
        a("s_mov_b64 exec, s[64:65]")
        a("s_cbranch_execz %s" % lbl)
        a.c("rare: slot full -> producer overflow list")
        a("ds_add_rtn_u32 v%d, v%d, v%d offset:%d" % (t0, vZ, vOne, A_OVFCNT))
        a("v_lshlrev_b32 v%d, 24, v%d" % (t1, vB[k]))
        a("v_or_b32 v%d, v%d, v%d" % (t1, t1, vR[k]))
        a("s_mul_i32 s68, s2, %d" % OVF_STRIDE)
        a("s_add_u32 s68, s68, %d" % WS_OVF)
        a("s_waitcnt lgkmcnt(0)")
        a("v_lshlrev_b32 v%d, 2, v%d" % (t0, t0))
        a("buffer_store_dword v%d, v%d, s[40:43], s68 offen" % (t1, t0))
        a("s_waitcnt vmcnt(0)")
        a.label(lbl)
        a("s_mov_b64 exec, s[66:67]")
    a("s_waitcnt vmcnt(4)")
    front(0)
    a("s_waitcnt vmcnt(2)")
    front(1)
    a("s_waitcnt vmcnt(0)")
    front(2)
    a("s_cmp_lg_u32 s3, 0")
    a("s_cbranch_scc1 A_F3")
    a("s_mov_b64 exec, s[48:49]")
    front(3)
    a("s_mov_b64 exec, -1")
    a.label("A_F3")
    a("s_waitcnt lgkmcnt(0)")
    for k in range(3):
        back(k, "A_OV%d" % k)
    a("s_cmp_lg_u32 s3, 0")
    a("s_cbranch_scc1 A_B3")
    a("s_mov_b64 exec, s[48:49]")
    back(3, "A_OV3")
    a("s_mov_b64 exec, -1")
    a.label("A_B3")
    a("s_waitcnt lgkmcnt(0)")
    a("s_barrier")
    a.c("readout: thread (ln = t>>3, c = t&7) rows ln and ln+128")
    a("v_lshrrev_b32 v%d, 3, v0" % t0)
    a("v_and_b32 v%d, 7, v0" % t1)
    a("v_mul_u32_u24 v%d, 160, v%d" % (t2, t0))
    a("v_lshl_add_u32 v%d, v%d, 2, v%d" % (t2, t1, t2))
    a("v_add_u32 v%d, %d, v%d" % (t3, 128 * 160, t2))
    a("ds_read2_b32 v[32:33], v%d offset0:0 offset1:8" % t2)
    a("ds_read2_b32 v[34:35], v%d offset0:16 offset1:24" % t2)
    a("ds_read2_b32 v[36:37], v%d offset0:0 offset1:8" % t3)
    a("ds_read2_b32 v[38:39], v%d offset0:16 offset1:24" % t3)
    a("ds_read_b32 v40, v%d offset:%d" % (vZ, A_OVFCNT))
    a("v_lshlrev_b32 v%d, 15, v%d" % (t0, t0))
    a("v_lshl_add_u32 v%d, v%d, 4, v%d" % (t0, t1, t0))
    a("s_lshl_b32 s44, s2, 7")
    a("s_add_u32 s44, s44, %d" % WS_SLOTS)
    a("s_add_u32 s45, s44, %d" % (128 * 32768))
    a("s_waitcnt lgkmcnt(3)")
    a("buffer_store_dwordx4 v[32:35], v%d, s[40:43], s44 offen" % t0)
    a("s_waitcnt lgkmcnt(1)")
    a("buffer_store_dwordx4 v[36:39], v%d, s[40:43], s45 offen" % t0)
    a("s_waitcnt lgkmcnt(0)")
    a("v_cmp_eq_u32 vcc, 0, v0")
    a("s_and_saveexec_b64 s[30:31], vcc")
    a("s_cbranch_execz A_END")
    a("s_lshl_b32 s46, s2, 2")
    a("s_add_u32 s46, s46, %d" % WS_HDR)
    a("buffer_store_dword v40, v%d, s[40:43], s46 offen" % vZ)
    a.label(end)
    a("s_endpgm")

vL = 1
vF16 = 2
vPAB = 3
vPBA = 4
vTR = 5
vWKa = 6
vLB = 7
vT0, vT1, vT2, vT3 = 8, 9, 10, 11
vOne = 12
vNL = 13
vNLB = 14
vZ = 15
E = list(range(16, 24))
ACC = list(range(24, 40))
S = list(range(40, 48))
EP = [48 + 2 * j for j in range(8)]
D = [64 + 8 * j for j in range(8)]
sX_IDX, sX_RAW, sWS, sDINV, sESRC, sOUT, sW1, sW2 = 32, 36, 40, 44, 48, 52, 56, 60
M = [64 + 2 * i for i in range(8)]
P = [80 + 2 * i for i in range(8)]
sT, sV, sJ, sFLAG, sRND = 96, 97, 98, 99, 100
sNODE0 = 4
sH, sHW = 5, 6
sTMP = 7

def mfma(a, d, A, B, Cz=False):
    c = "0" if Cz else "v[%d:%d]" % (d, d + 3)
    a("v_mfma_f32_16x16x32_bf16 v[%d:%d], v[%d:%d], v[%d:%d], %s" % (d, d + 3, A, A + 3, B, B + 3, c))

def trfrag(a, dst, base, s, t, areg=None):
    areg = vTR if areg is None else areg
    off = base + 32 * s * 144 + 64 * (t >> 1) + 8 * (t & 1)
    a("ds_read_b64_tr_b16 v[%d:%d], v%d offset:%d" % (dst, dst + 1, areg, off))
    a("ds_read_b64_tr_b16 v[%d:%d], v%d offset:%d" % (dst + 2, dst + 3, areg, off + 4 * 144))

def gen_B(a):
    kstart(a, KB)
    a("s_cmp_ge_u32 s2, %d" % NB)
    a("s_cbranch_scc1 B_END")
    load_kernargs(a)
    a("v_and_b32 v%d, 63, v0" % vL)
    a("v_readfirstlane_b32 s3, v0")
    a("v_and_b32 v%d, 3, v0" % vT0)
    a("v_lshlrev_b32 v%d, 4, v%d" % (vF16, vT0))
    a("s_lshr_b32 s3, s3, 6")
    a("v_and_b32 v%d, 15, v0" % vT1)
    a("v_lshrrev_b32 v%d, 4, v%d" % (vT2, vL))
    a("v_lshl_add_u32 v%d, v%d, 2, v%d" % (vPAB, vT1, vT2))
    a("v_lshlrev_b32 v%d, 2, v%d" % (vPAB, vPAB))
    a("v_lshrrev_b32 v%d, 2, v%d" % (vT3, vL))
    a("v_lshl_add_u32 v%d, v%d, 4, v%d" % (vPBA, vT0, vT3))
    a("v_lshlrev_b32 v%d, 2, v%d" % (vPBA, vPBA))
    a("v_and_b32 v%d, 3, v%d" % (vTR, vT3))
    a("v_lshl_add_u32 v%d, v%d, 3, v%d" % (vTR, vT2, vTR))
    a("v_mul_u32_u24 v%d, 144, v%d" % (vTR, vTR))
    a("v_add_u32 v%d, v%d, v%d" % (vTR, vTR, vF16))
    a("v_lshrrev_b32 v%d, 2, v%d" % (vWKa, vT1))
    a("v_lshlrev_b32 v%d, 3, v%d" % (vWKa, vWKa))
    a("v_and_b32 v%d, 3, v%d" % (vZ, vT1))
    a("v_add_u32 v%d, v%d, v%d" % (vWKa, vWKa, vZ))
    a("v_mul_u32_u24 v%d, 144, v%d" % (vWKa, vWKa))
    a("v_lshl_add_u32 v%d, v%d, 4, v%d" % (vWKa, vT2, vWKa))
    a("v_add_u32 v%d, %d, v%d" % (vWKa, L_WK, vWKa))
    a("s_lshl_b32 s30, s3, 4")
    a("v_add_u32 v%d, s30, v%d" % (vNL, vT3))
    a("v_min_u32 v%d, %d, v%d" % (vNL, BS, vNL))
    a("v_add_u32 v%d, s30, v%d" % (vNLB, vT1))
    a("v_min_u32 v%d, %d, v%d" % (vNLB, BS, vNLB))
    a("v_mov_b32 v%d, 1" % vOne)
    a("v_mov_b32 v%d, 0" % vZ)
    for j in range(8):
        a("v_mov_b32 v%d, v%d" % (EP[j] + 1, vF16))
    a("s_waitcnt lgkmcnt(0)")
    srd(a, sWS, 28, 29, WS_USED)
    a("v_lshlrev_b32 v%d, 4, v0" % vT0)
    a("s_lshl_b32 s30, s2, 15")
    a("s_add_u32 s30, s30, %d" % WS_SLOTS)
    a("s_add_u32 s31, s30, 16384")
    a("buffer_load_dwordx4 v[%d:%d], v%d, s[%d:%d], s30 offen" % (E[0], E[3], vT0, sWS, sWS + 3))
    a("buffer_load_dwordx4 v[%d:%d], v%d, s[%d:%d], s31 offen" % (E[4], E[7], vT0, sWS, sWS + 3))
    srd(a, sX_IDX, 4, 5, N, stride=128)
    srd(a, sX_RAW, 4, 5, N * 128)
    srd(a, sDINV, 14, 15, N * 2)
    srd(a, sESRC, 10, 11, N * 16)
    srd(a, sOUT, 24, 25, N * 128)
    a.c("weights: waves 0-7 wq / wl ; waves 8-15 wk / wv")
    a("s_cmp_lt_u32 s3, 8")
    a("s_cselect_b32 s%d, s18, s20" % sW1)
    a("s_cselect_b32 s%d, s19, s21" % (sW1 + 1))
    a("s_cselect_b32 s%d, s16, s22" % sW2)
    a("s_cselect_b32 s%d, s17, s23" % (sW2 + 1))
    a("s_mov_b32 s8, %d\ns_mov_b32 s9, %d" % (L_WK, L_WV))
    a("s_cselect_b32 s8, %d, s8" % L_WQ)
    a("s_cselect_b32 s9, %d, s9" % L_WL)
    a("s_and_b32 s%d, s%d, 0xffff" % (sW1 + 1, sW1 + 1))
    a("s_and_b32 s%d, s%d, 0xffff" % (sW2 + 1, sW2 + 1))
    a("s_mov_b32 s%d, 8192\ns_mov_b32 s%d, 0x20000" % (sW1 + 2, sW1 + 3))
    a("s_mov_b32 s%d, 8192\ns_mov_b32 s%d, 0x20000" % (sW2 + 2, sW2 + 3))
    a("s_mul_i32 s%d, s2, %d" % (sNODE0, BS))
    a("s_lshl_b32 s30, s3, 4")
    a("s_add_u32 s%d, s%d, s30" % (sNODE0, sNODE0))
    a("s_mov_b32 s%d, %d" % (sH, H))
    a("s_mov_b32 s%d, %d" % (sHW, N - H))
    a("s_mov_b32 s%d, 0\ns_mov_b32 s12, 0" % sRND)
    WA, WB = 112, 116
    XO = 96
    vES = 40
    a("v_and_b32 v%d, 511, v0" % vT1)
    a("v_lshlrev_b32 v%d, 4, v%d" % (vT2, vT1))
    a("s_cmp_ge_u32 s3, 13")
    a("s_cbranch_scc1 B_HELP0")
    a("v_lshlrev_b32 v%d, 2, v%d" % (vT3, vL))
    a("s_lshl_b32 s30, s%d, 4" % sNODE0)
    a("buffer_load_dword v%d, v%d, s[%d:%d], s30 offen" % (vES, vT3, sESRC, sESRC + 3))
    a("buffer_load_dwordx4 v[%d:%d], v%d, s[%d:%d], 0 offen" % (WA, WA + 3, vT2, sW1, sW1 + 3))
    a("buffer_load_dwordx4 v[%d:%d], v%d, s[%d:%d], 0 offen" % (WB, WB + 3, vT2, sW2, sW2 + 3))
    a("v_lshrrev_b32 v%d, 2, v%d" % (vT3, vL))
    a("v_lshl_add_u32 v%d, v%d, 7, v%d" % (vT3, vT3, vF16))
    a("s_lshl_b32 s30, s%d, 7" % sNODE0)
    a("buffer_load_dwordx4 v[%d:%d], v%d, s[%d:%d], s30 offen" % (XO, XO + 3, vT3, sX_RAW, sX_RAW + 3))
    a("buffer_load_dwordx4 v[%d:%d], v%d, s[%d:%d], s30 offen offset:64" % (XO + 4, XO + 7, vT3, sX_RAW, sX_RAW + 3))
    a("s_branch B_INIT")
    a.label("B_HELP0")
    a("buffer_load_dwordx4 v[%d:%d], v%d, s[%d:%d], 0 offen" % (WA, WA + 3, vT2, sW1, sW1 + 3))
    a("buffer_load_dwordx4 v[%d:%d], v%d, s[%d:%d], 0 offen" % (WB, WB + 3, vT2, sW2, sW2 + 3))
    a("v_lshlrev_b32 v%d, 4, v%d" % (vT3, vL))
    a("s_sub_u32 s30, s3, 13")
    a("s_mov_b32 s31, 27")
    a.label("B_DMA1")
    a("s_min_u32 s10, s30, 79")
    a("s_lshl_b32 s10, s10, 10")
    a("s_add_u32 m0, s10, %d" % L_DINV)
    a("s_add_u32 s30, s30, 3")
    a("buffer_load_dwordx4 v%d, s[%d:%d], s10 offen lds" % (vT3, sDINV, sDINV + 3))
    a("s_sub_u32 s31, s31, 1")
    a("s_cmp_lg_u32 s31, 0")
    a("s_cbranch_scc1 B_DMA1")
    a.label("B_INIT")
    a("v_mov_b32 v120, 0x%x" % (SENT | (SENT << 16)))
    a("v_mov_b32 v121, v120\nv_mov_b32 v122, v120\nv_mov_b32 v123, v120")
    a("v_cmp_gt_u32 vcc, 992, v0")
    a("s_and_saveexec_b64 s[30:31], vcc")
    a("ds_write_b128 v%d, v[120:123] offset:%d" % (vT0, L_LISTS))
    a("s_mov_b64 exec, s[30:31]")
    a("v_cmp_gt_u32 vcc, 256, v0")
    a("s_and_saveexec_b64 s[30:31], vcc")
    a("v_lshlrev_b32 v%d, 2, v0" % vT3)
    a("ds_write_b32 v%d, v%d offset:%d" % (vT3, vZ, L_CNT))
    a("s_mov_b64 exec, s[30:31]")
    a("v_lshrrev_b32 v124, 3, v%d" % vT1)
    a("v_mul_u32_u24 v124, 144, v124")
    a("v_and_b32 v125, 7, v%d" % vT1)
    a("v_lshl_add_u32 v124, v125, 4, v124")
    a("v_add_u32 v125, s9, v124")
    a("v_add_u32 v124, s8, v124")
    a("s_cmp_ge_u32 s3, 13")
    a("s_cbranch_scc1 B_HELP1")
    a("s_waitcnt vmcnt(2)")
    a("ds_write_b128 v124, v[%d:%d]" % (WA, WA + 3))
    a("ds_write_b128 v125, v[%d:%d]" % (WB, WB + 3))
    a.c("attention gathers")
    for j in range(4):
        a("v_mov_b32_dpp v%d, v%d quad_perm:[%d,%d,%d,%d] row_mask:0xf bank_mask:0xf" % (EP[j], vES, j, j, j, j))
    for j in range(4):
        a("buffer_load_dwordx4 v[%d:%d], v[%d:%d], s[%d:%d], 0 idxen offen" % (D[j], D[j] + 3, EP[j], EP[j] + 1, sX_IDX, sX_IDX + 3))
        a("buffer_load_dwordx4 v[%d:%d], v[%d:%d], s[%d:%d], 0 idxen offen offset:64" % (D[j] + 4, D[j] + 7, EP[j], EP[j] + 1, sX_IDX, sX_IDX + 3))
    a("s_branch B_BAR1")
    a.label("B_HELP1")
    a("s_waitcnt vmcnt(27)")
    a("ds_write_b128 v124, v[%d:%d]" % (WA, WA + 3))
    a("ds_write_b128 v125, v[%d:%d]" % (WB, WB + 3))
    a.label("B_BAR1")
    a("s_waitcnt lgkmcnt(0)")
    a("s_barrier")
    a("s_cmp_ge_u32 s3, 13")
    a("s_cbranch_scc1 B_BUILD_LO")
    XB, FR, D1, QB, QA = 104, 112, 24, 96, 96
    a("s_waitcnt vmcnt(8)")
    a("v_add_u32 v%d, %d, v%d" % (vT0, L_WQ, vTR))
    for k in range(8):
        a("ds_bpermute_b32 v%d, v%d, v%d" % (XB + k, vPAB, XO + k))
    for t in range(4):
        if t == 0:
            trfrag(a, FR, 0, 0, 0, vT0); trfrag(a, FR + 4, 0, 1, 0, vT0)
        if t < 3:
            o = FR + 8 * ((t + 1) & 1)
            trfrag(a, o, 0, 0, t + 1, vT0); trfrag(a, o + 4, 0, 1, t + 1, vT0)
            a("s_waitcnt lgkmcnt(4)")
        else:
            a("s_waitcnt lgkmcnt(0)")
        c = FR + 8 * (t & 1)
        mfma(a, D1 + 4 * t, c, XB, Cz=True)
        mfma(a, D1 + 4 * t, c + 4, XB + 4)
    def wkfrag(dst, ti, s):
        a("ds_read_b128 v[%d:%d], v%d offset:%d" % (dst, dst + 3, vWKa, (32 * (ti >> 1) + 4 * (ti & 1)) * 144 + 64 * s))
    a("s_nop 7")
    for t in range(4):
        a("v_cvt_pk_bf16_f32 v%d, v%d, v%d" % (QB + 2 * t, D1 + 4 * t, D1 + 4 * t + 1))
        a("v_cvt_pk_bf16_f32 v%d, v%d, v%d" % (QB + 2 * t + 1, D1 + 4 * t + 2, D1 + 4 * t + 3))
    for t in range(4):
        if t == 0:
            wkfrag(FR, 0, 0); wkfrag(FR + 4, 0, 1)
        if t < 3:
            o = FR + 8 * ((t + 1) & 1)
            wkfrag(o, t + 1, 0); wkfrag(o + 4, t + 1, 1)
            a("s_waitcnt lgkmcnt(2)")
        else:
            a("s_waitcnt lgkmcnt(0)")
        c = FR + 8 * (t & 1)
        mfma(a, D1 + 4 * t, c, QB, Cz=True)
        mfma(a, D1 + 4 * t, c + 4, QB + 4)
    a("s_nop 7")
    QPB = XB
    for t in range(4):
        a("v_cvt_pk_bf16_f32 v%d, v%d, v%d" % (QPB + 2 * t, D1 + 4 * t, D1 + 4 * t + 1))
        a("v_cvt_pk_bf16_f32 v%d, v%d, v%d" % (QPB + 2 * t + 1, D1 + 4 * t + 2, D1 + 4 * t + 3))
    for k in range(8):
        a("ds_bpermute_b32 v%d, v%d, v%d" % (QA + k, vPBA, QPB + k))
    AI = [112 + i for i in range(8)]
    RI = [120 + i for i in range(8)]
    a.label("B_BUILD_LO")
    a.c("slots must have arrived: tile waves waited vmcnt(8) after older loads; helpers waited vmcnt(27); reload path waits itself")
    a("s_mov_b32 s%d, 0" % sFLAG)
    for i in range(8):
        a("v_lshlrev_b32_sdwa v%d, 2, v%d dst_sel:DWORD dst_unused:UNUSED_PAD src0_sel:DWORD src1_sel:BYTE_2" % (AI[i], E[i]))
    def build_pass(hi):
        order = [3, 7, 2, 6, 1, 5, 0, 4] if hi else [0, 4, 1, 5, 2, 6, 3, 7]
        for i in order:
            a("v_and_b32 v%d, 0xffff, v%d" % (vT0, E[i]))
            if hi:
                a("v_subrev_u32 v%d, s%d, v%d" % (vT0, sH, vT0))
                a("v_cmp_gt_u32 s[%d:%d], s%d, v%d" % (M[i], M[i] + 1, sHW, vT0))
            else:
                a("v_cmp_gt_u32 s[%d:%d], s%d, v%d" % (M[i], M[i] + 1, sH, vT0))
        for i in order:
            a("s_mov_b64 exec, s[%d:%d]" % (M[i], M[i] + 1))
            a("ds_add_rtn_u32 v%d, v%d, v%d offset:%d" % (RI[i], AI[i], vOne, L_CNT))
        a("s_mov_b64 exec, -1")
        for n, i in enumerate(order):
            a("s_mov_b64 exec, s[%d:%d]" % (M[i], M[i] + 1))
            a("s_waitcnt lgkmcnt(7)")
            a("v_cmp_gt_u32 vcc, %d, v%d" % (CAP, RI[i]))
            a("v_lshlrev_b32 v%d, 1, v%d" % (vT0, RI[i]))
            a("v_mad_u32_u24 v%d, v%d, 20, v%d" % (vT0, AI[i], vT0))
            if hi:
                a("s_andn2_b64 s[30:31], exec, vcc")
                a("s_or_b64 s[%d:%d], s[%d:%d], s[30:31]" % (P[i], P[i] + 1, P[i], P[i] + 1))
            else:
                a("s_andn2_b64 s[%d:%d], exec, vcc" % (P[i], P[i] + 1))
            a("s_and_b64 exec, exec, vcc")
            a("ds_write_b16 v%d, v%d offset:%d" % (vT0, E[i], L_LISTS))
        a("s_mov_b64 exec, -1")
    build_pass(False)
    a("s_waitcnt lgkmcnt(0)")
    a("s_barrier")
    a("s_cmp_lt_u32 s3, 13")
    a("s_cbranch_scc1 B_BUILD_HI")
    a("s_cmp_lg_u32 s%d, 0" % sRND)
    a("s_cbranch_scc1 B_BUILD_HI")
    a("v_lshlrev_b32 v%d, 4, v%d" % (vT3, vL))
    a("s_sub_u32 s30, s3, 13")
    a("s_add_u32 s30, s30, 80")
    for k in range(6):
        a("s_lshl_b32 s10, s30, 10")
        a("s_add_u32 m0, s10, %d" % L_DINV)
        a("s_add_u32 s30, s30, 3")
        a("buffer_load_dwordx4 v%d, s[%d:%d], s10 offen lds" % (vT3, sDINV, sDINV + 3))
    a.label("B_BUILD_HI")
    build_pass(True)
    a("s_or_b64 s[30:31], s[%d:%d], s[%d:%d]" % (P[0], P[0] + 1, P[1], P[1] + 1))
    for i in range(2, 8):
        a("s_or_b64 s[30:31], s[30:31], s[%d:%d]" % (P[i], P[i] + 1))
    a("s_cmp_lg_u64 s[30:31], 0")
    a("s_cselect_b32 s%d, 1, 0" % sFLAG)
    a("s_cmp_lg_u32 s%d, 0" % sRND)
    a("s_cbranch_scc1 B_NOFULL")
    for (i, j) in ((1, 2), (5, 6)):
        a("v_and_b32 v%d, 0xffff, v%d" % (vT0, E[i]))
        a("v_and_b32 v%d, 0xffff, v%d" % (vT1, E[j]))
        a("v_max_u32 v%d, v%d, v%d" % (vT0, vT0, vT1))
        a("v_cmp_gt_u32 vcc, %d, v%d" % (N, vT0))
        a("s_bcnt1_i32_b64 s30, vcc")
        a("s_cmp_ge_u32 s30, 8")
        a("s_cselect_b32 s30, 2, 0")
        a("s_or_b32 s%d, s%d, s30" % (sFLAG, sFLAG))
    a.label("B_NOFULL")
    a("s_cmp_eq_u32 s%d, 0" % sFLAG)
    a("s_cbranch_scc1 B_NOFLAG")
    a("v_mov_b32 v%d, s%d" % (vT0, sFLAG))
    a("ds_or_b32 v%d, v%d offset:%d" % (vZ, vT0, L_FLAG))
    a.label("B_NOFLAG")
    a("s_cmp_ge_u32 s3, 13")
    a("s_cbranch_scc1 B_BAR3")
    a("s_cmp_lg_u32 s%d, 0" % sRND)
    a("s_cbranch_scc1 B_BAR3")
    a("s_waitcnt vmcnt(0) lgkmcnt(0)")
    EE = [40, 41, 42, 43]
    for j in range(4):
        a("v_dot2_f32_bf16 v%d, v%d, v%d, 0" % (EE[j], D[j], QA))
    for k in range(1, 8):
        for j in range(4):
            a("v_dot2c_f32_bf16 v%d, v%d, v%d" % (EE[j], D[j] + k, QA + k))
    a("s_nop 1")
    for j in range(4):
        a("v_add_f32_dpp v%d, v%d, v%d quad_perm:[1,0,3,2] row_mask:0xf bank_mask:0xf" % (EE[j], EE[j], EE[j]))
    a("s_nop 0")
    for j in range(4):
        a("v_add_f32_dpp v%d, v%d, v%d quad_perm:[2,3,0,1] row_mask:0xf bank_mask:0xf" % (EE[j], EE[j], EE[j]))
    import math
    c = 0.125 * math.log2(math.e)
    import struct
    cbits = struct.unpack("<I", struct.pack("<f", c))[0]
    for j in range(4):
        a("v_mul_f32 v%d, 0x%x, v%d" % (EE[j], cbits, EE[j]))
    for j in range(4):
        a("v_exp_f32 v%d, v%d" % (EE[j], EE[j]))
    a("s_nop 0")
    a("v_add_f32 v44, v%d, v%d" % (EE[0], EE[1]))
    a("v_add_f32 v45, v%d, v%d" % (EE[2], EE[3]))
    a("v_add_f32 v44, v44, v45")
    a("v_add_f32 v44, 0x%x, v44" % struct.unpack("<I", struct.pack("<f", 1e-9))[0])
    a("v_rcp_f32 v44, v44")
    a("s_nop 0")
    for j in range(4):
        a("v_mul_f32 v%d, v%d, v44" % (EE[j], EE[j]))
    AL = [44, 45, 46, 47]; AH = [104, 105, 106, 107]
    for j in range(4):
        a("v_cvt_pk_bf16_f32 v%d, v%d, v%d" % (AL[j], EE[j], vZ))
        a("v_cvt_pk_bf16_f32 v%d, v%d, v%d" % (AH[j], vZ, EE[j]))
    for k in range(8):
        a("v_dot2_f32_bf16 v%d, v%d, v%d, 0" % (ACC[2 * k], D[0] + k, AL[0]))
        a("v_dot2_f32_bf16 v%d, v%d, v%d, 0" % (ACC[2 * k + 1], D[0] + k, AH[0]))
    for j in range(1, 4):
        for k in range(8):
            a("v_dot2c_f32_bf16 v%d, v%d, v%d" % (ACC[2 * k], D[j] + k, AL[j]))
            a("v_dot2c_f32_bf16 v%d, v%d, v%d" % (ACC[2 * k + 1], D[j] + k, AH[j]))
    YB = 96
    for k in range(8):
        a("v_cvt_pk_bf16_f32 v%d, v%d, v%d" % (YB + k, ACC[2 * k], ACC[2 * k + 1]))
    a("v_and_b32 v%d, 7, v%d" % (vT0, vNL))
    a("v_lshlrev_b32 v%d, 4, v%d" % (vT0, vT0))
    a("v_xor_b32 v%d, v%d, v%d" % (vT0, vT0, vF16))
    a("v_lshl_add_u32 v%d, v%d, 7, v%d" % (vT0, vNL, vT0))
    a("v_xor_b32 v%d, 64, v%d" % (vT1, vT0))
    a("ds_write_b128 v%d, v[%d:%d] offset:%d" % (vT0, YB, YB + 3, L_Y))
    a("ds_write_b128 v%d, v[%d:%d] offset:%d" % (vT1, YB + 4, YB + 7, L_Y))
    for k in range(16):
        a("v_mov_b32 v%d, 0" % ACC[k])
    a.label("B_BAR3")
    a("s_waitcnt vmcnt(0) lgkmcnt(0)")
    a("s_barrier")
    a("ds_read_b32 v%d, v%d offset:%d" % (vT0, vZ, L_FLAG))
    a("v_lshlrev_b32 v%d, 2, v%d" % (vT1, vNL))
    a("ds_read_b32 v%d, v%d offset:%d" % (vT1, vT1, L_CNT))
    a("s_waitcnt lgkmcnt(0)")
    a("v_readfirstlane_b32 s%d, v%d" % (sFLAG, vT0))
    a("s_nop 0")
    a("s_and_b32 s30, s%d, 1" % sFLAG)
    a("s_cbranch_scc0 B_NOSPILL")
    a.c("rare: keep only pending entries and spill them")
    a("v_mov_b32 v%d, 0x00ffffff" % vT2)
    for i in range(8):
        a("v_cndmask_b32 v%d, v%d, v%d, s[%d:%d]" % (E[i], vT2, E[i], P[i], P[i] + 1))
    a("v_lshlrev_b32 v%d, 4, v0" % vT2)
    a("s_lshl_b32 s30, s2, 15")
    a("s_add_u32 s30, s30, %d" % WS_SPILL)
    a("s_add_u32 s31, s30, 16384")
    a("buffer_store_dwordx4 v[%d:%d], v%d, s[%d:%d], s30 offen" % (E[0], E[3], vT2, sWS, sWS + 3))
    a("buffer_store_dwordx4 v[%d:%d], v%d, s[%d:%d], s31 offen" % (E[4], E[7], vT2, sWS, sWS + 3))
    a("s_waitcnt vmcnt(0)")
    a.label("B_NOSPILL")
    a("s_cmp_ge_u32 s3, 13")
    a("s_cbranch_scc1 B_GDONE")
    a("v_min_u32 v%d, %d, v%d" % (vT1, CAP, vT1))
    a("s_nop 1")
    a("v_max_u32_dpp v%d, v%d, v%d row_shr:4 row_mask:0xf bank_mask:0xf" % (vT1, vT1, vT1))
    a("s_nop 1")
    a("v_max_u32_dpp v%d, v%d, v%d row_shr:8 row_mask:0xf bank_mask:0xf" % (vT1, vT1, vT1))
    a("s_nop 1")
    a("v_readlane_b32 s8, v%d, 15\nv_readlane_b32 s9, v%d, 31\nv_readlane_b32 s10, v%d, 47\nv_readlane_b32 s11, v%d, 63" % (vT1, vT1, vT1, vT1))
    a("s_nop 0")
    a("s_max_u32 s8, s8, s9\ns_max_u32 s10, s10, s11\ns_max_u32 s8, s8, s10")
    a("s_max_u32 s%d, s8, 8" % sT)
    a("s_sub_u32 s%d, 0, s%d" % (sJ, sT))
    a("s_and_b32 s%d, s%d, 7" % (sJ, sJ))
    a("v_mul_u32_u24 v%d, 80, v%d" % (vLB, vNL))
    a("s_lshl_b32 s8, s%d, 1" % sJ)
    a("s_sub_u32 s8, %d, s8" % L_LISTS)
    a("v_add_u32 v%d, s8, v%d" % (vLB, vLB))
    for j in range(8):
        a("s_cmp_gt_u32 s%d, %d" % (sJ, j))
        a("s_cselect_b32 s9, 16, 0")
        a("v_add_u32 v%d, s9, v%d" % (vT0, vLB))
        a("ds_read_u16 v%d, v%d offset:%d" % (EP[j], vT0, 2 * j))
    a("s_mov_b32 s%d, 0" % sV)
    a("s_waitcnt lgkmcnt(0)")
    for j in range(1, 8):
        a("s_cmp_eq_u32 s%d, %d" % (sJ, j))
        a("s_cbranch_scc1 B_POS%d" % j)
    def consume(j):
        a("v_lshlrev_b32 v%d, 16, v%d" % (vT0, S[j]))
        for k in range(8):
            a("v_dot2c_f32_bf16 v%d, v%d, v%d" % (ACC[2 * k], D[j] + k, S[j]))
        for k in range(8):
            a("v_dot2c_f32_bf16 v%d, v%d, v%d" % (ACC[2 * k + 1], D[j] + k, vT0))
    for j in range(8):
        a.label("B_POS%d" % j)
        a("s_cmp_lt_u32 s%d, 8" % sV)
        a("s_cbranch_scc1 B_ISS%d" % j)
        a("s_waitcnt vmcnt(14) lgkmcnt(14)")
        consume(j)
        a.label("B_ISS%d" % j)
        a("v_lshlrev_b32 v%d, 1, v%d" % (vT1, EP[j]))
        a("buffer_load_dwordx4 v[%d:%d], v[%d:%d], s[%d:%d], 0 idxen offen" % (D[j], D[j] + 3, EP[j], EP[j] + 1, sX_IDX, sX_IDX + 3))
        a("buffer_load_dwordx4 v[%d:%d], v[%d:%d], s[%d:%d], 0 idxen offen offset:64" % (D[j] + 4, D[j] + 7, EP[j], EP[j] + 1, sX_IDX, sX_IDX + 3))
        a("ds_read_u16 v%d, v%d offset:%d" % (S[j], vT1, L_DINV))
        a("ds_read_u16 v%d, v%d offset:%d" % (EP[j], vLB, 16 + 2 * j))
        a("s_add_u32 s%d, s%d, 1" % (sV, sV))
    a("v_add_u32 v%d, 16, v%d" % (vLB, vLB))
    a("s_cmp_lt_u32 s%d, s%d" % (sV, sT))
    a("s_cbranch_scc1 B_POS0")
    a("s_waitcnt lgkmcnt(0)")
    for j in range(8):
        a("s_waitcnt vmcnt(%d)" % (14 - 2 * j))
        consume(j)
    a.label("B_GDONE")
    a("s_or_b32 s30, s%d, s12" % sFLAG)
    a("s_cbranch_scc1 B_RARE")
    a.label("B_EPI")
    a("s_cmp_ge_u32 s3, 13")
    a("s_cbranch_scc1 B_END")
    AG, AGB, YBB, FR, DO, OB, OA = 96, 104, 112, 64, 80, 96, 104
    a("s_mul_i32 s8, s2, %d" % BS)
    a("v_add_u32 v%d, s8, v%d" % (vT2, vNL))
    a("v_min_u32 v%d, %d, v%d" % (vT0, N, vT2))
    a("v_lshlrev_b32 v%d, 1, v%d" % (vT0, vT0))
    a("ds_read_u16 v%d, v%d offset:%d" % (vT0, vT0, L_DINV))
    a("v_lshrrev_b32 v%d, 4, v%d" % (vT1, vL))
    a("v_and_b32 v%d, 7, v%d" % (vT3, vNLB))
    a("v_xor_b32 v%d, v%d, v%d" % (vT1, vT1, vT3))
    a("v_lshlrev_b32 v%d, 4, v%d" % (vT1, vT1))
    a("v_lshl_add_u32 v%d, v%d, 7, v%d" % (vT1, vNLB, vT1))
    a("v_xor_b32 v%d, 64, v%d" % (vT3, vT1))
    a("ds_read_b128 v[%d:%d], v%d offset:%d" % (YBB, YBB + 3, vT1, L_Y))
    a("ds_read_b128 v[%d:%d], v%d offset:%d" % (YBB + 4, YBB + 7, vT3, L_Y))
    a("s_waitcnt lgkmcnt(2)")
    a("v_lshlrev_b32 v%d, 16, v%d" % (vT0, vT0))
    for k in range(16):
        a("v_mul_f32 v%d, v%d, v%d" % (ACC[k], ACC[k], vT0))
    for k in range(8):
        a("v_cvt_pk_bf16_f32 v%d, v%d, v%d" % (AG + k, ACC[2 * k], ACC[2 * k + 1]))
    for k in range(8):
        a("ds_bpermute_b32 v%d, v%d, v%d" % (AGB + k, vPAB, AG + k))
    for t in range(4):
        o = FR if (t & 1) == 0 else 40
        trfrag(a, o, L_WL, 0, t); trfrag(a, o + 4, L_WL, 1, t)
        trfrag(a, o + 8, L_WV, 0, t); trfrag(a, o + 12, L_WV, 1, t)
        a("s_waitcnt lgkmcnt(0)")
        mfma(a, DO + 4 * t, o, AGB, Cz=True)
        mfma(a, DO + 4 * t, o + 4, AGB + 4)
        mfma(a, DO + 4 * t, o + 8, YBB)
        mfma(a, DO + 4 * t, o + 12, YBB + 4)
    a("s_nop 7")
    for t in range(4):
        a("v_cvt_pk_bf16_f32 v%d, v%d, v%d" % (OB + 2 * t, DO + 4 * t, DO + 4 * t + 1))
        a("v_cvt_pk_bf16_f32 v%d, v%d, v%d" % (OB + 2 * t + 1, DO + 4 * t + 2, DO + 4 * t + 3))
    for k in range(8):
        a("ds_bpermute_b32 v%d, v%d, v%d" % (OA + k, vPBA, OB + k))
    a("v_lshl_add_u32 v%d, v%d, 7, v%d" % (vT2, vT2, vF16))
    a("v_cmp_gt_u32 vcc, %d, v%d" % (BS, vNL))
    a("v_mov_b32 v%d, 0x7fffff00" % vT0)
    a("s_nop 0")
    a("v_cndmask_b32 v%d, v%d, v%d, vcc" % (vT2, vT0, vT2))
    a("s_waitcnt lgkmcnt(0)")
    a("buffer_store_dwordx4 v[%d:%d], v%d, s[%d:%d], 0 offen" % (OA, OA + 3, vT2, sOUT, sOUT + 3))
    a("buffer_store_dwordx4 v[%d:%d], v%d, s[%d:%d], 0 offen offset:64" % (OA + 4, OA + 7, vT2, sOUT, sOUT + 3))
    a.label("B_END")
    a("s_endpgm")
    a.label("B_RARE")
    a("s_barrier")
    a("s_add_u32 s%d, s%d, 1" % (sRND, sRND))
    a("s_cmp_eq_u32 s%d, 1" % sRND)
    a("s_cbranch_scc0 B_R1")
    a("s_and_b32 s12, s%d, 2" % sFLAG)
    a("s_mov_b32 s13, 0")
    a.label("B_R1")
    a("s_and_b32 s30, s%d, 1" % sFLAG)
    a("s_cbranch_scc0 B_RNEXT")
    a.c("reload pending entries")
    a("v_lshlrev_b32 v%d, 4, v0" % vT2)
    a("s_lshl_b32 s30, s2, 15")
    a("s_add_u32 s30, s30, %d" % WS_SPILL)
    a("s_add_u32 s31, s30, 16384")
    a("buffer_load_dwordx4 v[%d:%d], v%d, s[%d:%d], s30 offen sc1" % (E[0], E[3], vT2, sWS, sWS + 3))
    a("buffer_load_dwordx4 v[%d:%d], v%d, s[%d:%d], s31 offen sc1" % (E[4], E[7], vT2, sWS, sWS + 3))
    a("s_branch B_RINIT")
    a.label("B_RNEXT")
    a("s_cmp_eq_u32 s12, 0")
    a("s_cbranch_scc1 B_EPI")
    a("s_cmp_lg_u32 s13, 0")
    a("s_cbranch_scc1 B_RHAVE")
    a.c("load the 256 overflow headers; every wave builds the same 4 masks s[14:21]")
    a("s_mov_b32 s13, 1")
    a("v_lshlrev_b32 v%d, 2, v%d" % (vT2, vL))
    a("s_mov_b32 s30, %d" % WS_HDR)
    a("buffer_load_dword v%d, v%d, s[%d:%d], s30 offen" % (112, vT2, sWS, sWS + 3))
    a("buffer_load_dword v%d, v%d, s[%d:%d], s30 offen offset:256" % (113, vT2, sWS, sWS + 3))
    a("buffer_load_dword v%d, v%d, s[%d:%d], s30 offen offset:512" % (114, vT2, sWS, sWS + 3))
    a("buffer_load_dword v%d, v%d, s[%d:%d], s30 offen offset:768" % (115, vT2, sWS, sWS + 3))
    a("s_waitcnt vmcnt(0)")
    for q in range(4):
        a("v_cmp_ne_u32 s[%d:%d], 0, v%d" % (14 + 2 * q, 15 + 2 * q, 112 + q))
    a.label("B_RHAVE")
    a.c("find next producer with overflow")
    for q in range(4):
        a("s_cmp_lg_u64 s[%d:%d], 0" % (14 + 2 * q, 15 + 2 * q))
        a("s_cbranch_scc1 B_RQ%d" % q)
    a("s_branch B_EPI")
    for q in range(4):
        a.label("B_RQ%d" % q)
        a("s_ff1_i32_b64 s22, s[%d:%d]" % (14 + 2 * q, 15 + 2 * q))
        a("s_bitset0_b64 s[%d:%d], s22" % (14 + 2 * q, 15 + 2 * q))
        a("s_add_u32 s22, s22, %d" % (64 * q))
        a("s_branch B_RGOT")
    a.label("B_RGOT")
    a.c("producer s22: load its count and list; keep entries of my bucket")
    a("s_lshl_b32 s30, s22, 2")
    a("s_add_u32 s30, s30, %d" % WS_HDR)
    a("buffer_load_dword v%d, v%d, s[%d:%d], s30 offen" % (vT3, vZ, sWS, sWS + 3))
    a("s_mul_i32 s30, s22, %d" % OVF_STRIDE)
    a("s_add_u32 s30, s30, %d" % WS_OVF)
    a("v_lshlrev_b32 v%d, 2, v0" % vT2)
    for k in range(4):
        a("s_add_u32 s31, s30, %d" % (4096 * k))
        a("buffer_load_dword v%d, v%d, s[%d:%d], s31 offen" % (E[k], vT2, sWS, sWS + 3))
    a("s_waitcnt vmcnt(0)")
    a("v_and_b32 v%d, 0xffffff, v%d" % (vT3, vT3))
    a("v_mov_b32 v%d, 0x00ffffff" % vT1)
    for k in range(4):
        a("v_add_u32 v%d, %d, v0" % (vT0, 1024 * k))
        a("v_cmp_lt_u32 vcc, v%d, v%d" % (vT0, vT3))
        a("v_lshrrev_b32 v%d, 24, v%d" % (vT0, E[k]))
        a("v_cmp_eq_u32 s[30:31], s2, v%d" % vT0)
        a("s_and_b64 vcc, vcc, s[30:31]")
        a("s_nop 0")
        a("v_cndmask_b32 v%d, v%d, v%d, vcc" % (E[k], vT1, E[k]))
    for k in range(4, 8):
        a("v_mov_b32 v%d, v%d" % (E[k], vT1))
    a.label("B_RINIT")
    a.c("re-init lists / counters / flag")
    a("v_mov_b32 v120, 0x%x" % (SENT | (SENT << 16)))
    a("v_mov_b32 v121, v120\nv_mov_b32 v122, v120\nv_mov_b32 v123, v120")
    a("v_lshlrev_b32 v%d, 4, v0" % vT0)
    a("v_cmp_gt_u32 vcc, 992, v0")
    a("s_and_saveexec_b64 s[30:31], vcc")
    a("ds_write_b128 v%d, v[120:123] offset:%d" % (vT0, L_LISTS))
    a("s_mov_b64 exec, s[30:31]")
    a("v_cmp_gt_u32 vcc, 256, v0")
    a("s_and_saveexec_b64 s[30:31], vcc")
    a("v_lshlrev_b32 v%d, 2, v0" % vT3)
    a("ds_write_b32 v%d, v%d offset:%d" % (vT3, vZ, L_CNT))
    a("s_mov_b64 exec, s[30:31]")
    a("s_waitcnt vmcnt(0) lgkmcnt(0)")
    a("s_barrier")
    a("s_branch B_BUILD_LO")

def main():
    a = Asm()
    header(a)
    gen_A(a)
    gen_B(a)
    a('.section .rodata,"a"')
    a(".p2align 6")
    kdesc(a, KA, 64, 96)
    a(".p2align 6")
    kdesc(a, KB, 128, 102)
    txt = a.text()
    out = sys.argv[1] if len(sys.argv) > 1 else "k2.s"
    open(out, "w").write(txt)
    pr = lint(txt)
    print("wrote", out, "lines", txt.count("\n"), "hazards", len(pr))

main()
```

```python
import sys
from asmlib import Asm, lint

N = 50000
BS = 196
NB = 256
CHUNK = 3125
H = 25000
CAP = 40
SENT = 50000
WS_SLOTS = 0
WS_OVF = 8388608
OVF_STRIDE = 12544
WS_HDR = 12 * 1024 * 1024
WS_SPILL = 16 * 1024 * 1024
WS_USED = 24 * 1024 * 1024
L_LISTS = 0
L_CNT = 15872
L_FLAG = L_CNT + 1020
L_Y = 16896
L_WL = 42240
L_WV = 51456
L_MISC = 60672
L_DINV = 63488
L_WQ = L_DINV + 81920
L_WK = L_WQ + 9216
L_TOTAL_B = 163840
A_STG = 0
A_CNT = 40960
A_OVFCNT = 41984
L_TOTAL_A = 98304

import os
STAMPS = int(os.environ.get("STAMPS", "0"))
WS_DIAG = 32 * 1024 * 1024
if STAMPS: WS_USED = 40 * 1024 * 1024
_st = {"n": 0}
def stamp(a, base=14):
    if not STAMPS: return
    i = _st["n"]; _st["n"] += 1
    a("s_memrealtime s[30:31]")
    a("s_waitcnt lgkmcnt(0)")
    a("s_mov_b32 s%d, s30" % (base + i))
def stamp_dump(a, ws, which, base=14):
    if not STAMPS: return
    n = _st["n"]; _st["n"] = 0
    if STAMPS == 2:
        lbl = "DBG_SKIP%d" % which
        a("s_cmp_lg_u32 s2, 0")
        a("s_cbranch_scc1 %s" % lbl)
        a("s_cmp_lg_u32 s3, %d" % (0 if which == 0 else 12))
        a("s_cbranch_scc1 %s" % lbl)
        a("s_mov_b64 exec, -1")
        a("v_and_b32 v9, 63, v0")
        a("v_lshlrev_b32 v9, 2, v9")
        a("s_mov_b32 s30, %d" % WS_DIAG)
        if which == 0:
            a("v_mov_b32 v8, 0")
            a("v_writelane_b32 v8, s%d, 0" % base)
            a("v_writelane_b32 v8, s%d, 1" % (base + n - 1))
            a("v_cmp_gt_u32 vcc, 8, v9")
            a("s_and_saveexec_b64 s[12:13], vcc")
            a("buffer_store_dword v8, v9, s[%d:%d], s30 offen" % (ws, ws + 3))
        else:
            a("v_mov_b32 v10, 0")
            a("buffer_load_dword v11, v10, s[%d:%d], s30 offen" % (ws, ws + 3))
            a("buffer_load_dword v12, v10, s[%d:%d], s30 offen offset:4" % (ws, ws + 3))
            a("s_load_dwordx2 s[4:5], s[0:1], 88")
            a("s_waitcnt lgkmcnt(0) vmcnt(0)")
            a("s_and_b32 s5, s5, 0xffff\ns_mov_b32 s6, 256\ns_mov_b32 s7, 0x20000")
            a("v_mov_b32 v8, v12")
            for q in range(n):
                a("v_writelane_b32 v8, s%d, %d" % (base + q, q + 1))
            a("v_sub_u32 v8, v8, v11")
            a("v_cmp_gt_u32 vcc, %d, v9" % (4 * (n + 1)))
            a("s_and_saveexec_b64 s[12:13], vcc")
            a("buffer_store_dword v8, v9, s[4:7], 0 offen")
        a.label(lbl)
        return
    a("s_mov_b64 exec, -1")
    a("v_mov_b32 v8, 0")
    for i in range(n):
        a("v_writelane_b32 v8, s%d, %d" % (base + i, i))
    a("v_and_b32 v9, 63, v0")
    a("v_lshlrev_b32 v9, 2, v9")
    a("s_lshl_b32 s30, s2, 4")
    a("s_add_u32 s30, s30, s3")
    a("s_lshl_b32 s30, s30, 6")
    a("s_add_u32 s30, s30, %d" % (WS_DIAG + which * 1024 * 1024))
    a("v_cmp_gt_u32 vcc, 16, v9" if False else "v_cmp_gt_u32 vcc, 64, v9")
    a("s_and_saveexec_b64 s[12:13], vcc")
    a("buffer_store_dword v8, v9, s[%d:%d], s30 offen" % (ws, ws + 3))

A_SC1 = int(os.environ.get("A_SC1", "0"))
B_SC1 = int(os.environ.get("B_SC1", "0"))
PT_OUT = int(os.environ.get("PT_OUT", "0"))
PT_SLOT = int(os.environ.get("PT_SLOT", "0"))
KA = "exph_bin_kernel"
KB = "exph_main_kernel"

def header(a):
    a.lines.append("; Exphormer graph layer: kernel 1 bins the local edges by destination bucket, kernel 2 aggregates + attention + projection")
    a.lines.append("; @launch kernel=%s grid=(256,1,1) block=(1024,1,1) lds=%d" % (KA, L_TOTAL_A))
    a.lines.append("; @launch kernel=%s grid=(256,1,1) block=(1024,1,1) lds=%d" % (KB, L_TOTAL_B))
    a('.amdgcn_target "amdgcn-amd-amdhsa--gfx950"')
    a(".text")

def kstart(a, name):
    a(".globl %s" % name)
    a(".p2align 8")
    a(".type %s,@function" % name)
    a.label(name)

def kdesc(a, name, vg, sg):
    a(".amdhsa_kernel %s" % name)
    a("  .amdhsa_next_free_vgpr %d" % vg)
    a("  .amdhsa_next_free_sgpr %d" % sg)
    a("  .amdhsa_accum_offset %d" % vg)
    a("  .amdhsa_group_segment_fixed_size 0")
    a("  .amdhsa_kernarg_size 104")
    a("  .amdhsa_user_sgpr_count 2")
    a("  .amdhsa_user_sgpr_kernarg_segment_ptr 1")
    a("  .amdhsa_system_sgpr_workgroup_id_x 1")
    a(".end_amdhsa_kernel")

def srd(a, s, lo, hi, nrec, stride=0):
    a("s_mov_b32 s%d, s%d" % (s, lo))
    if stride:
        a("s_and_b32 s%d, s%d, 0xffff" % (s + 1, hi))
        a("s_or_b32 s%d, s%d, 0x%x" % (s + 1, s + 1, stride << 16))
    else:
        a("s_and_b32 s%d, s%d, 0xffff" % (s + 1, hi))
    a("s_mov_b32 s%d, %d" % (s + 2, nrec))
    a("s_mov_b32 s%d, 0x20000" % (s + 3))

def load_kernargs(a):
    a("s_load_dwordx16 s[4:19], s[0:1], 0")
    a("s_load_dwordx8 s[20:27], s[0:1], 64")
    a("s_load_dwordx2 s[28:29], s[0:1], 96")

def gen_A(a):
    kstart(a, KA)
    end = "A_END"
    a("s_cmp_ge_u32 s2, %d" % NB)
    a("s_cbranch_scc1 %s" % end)
    stamp(a, 70)
    load_kernargs(a)
    vOff, vOne, v64k, v31, vZ = 1, 2, 3, 4, 5
    vD = [8, 9, 10, 11]; vS = [12, 13, 14, 15]
    vB = [16, 17, 18, 19]; vR = [20, 21, 22, 23]; vO = [24, 25, 26, 27]
    t0, t1, t2, t3 = 28, 29, 30, 31
    a("v_lshlrev_b32 v%d, 2, v0" % vOff)
    a("v_readfirstlane_b32 s3, v0")
    a("v_mov_b32 v%d, 1" % vOne)
    a("v_mov_b32 v%d, 0x10000" % v64k)
    a("v_mov_b32 v%d, 31" % v31)
    a("v_mov_b32 v%d, 0" % vZ)
    a("s_lshr_b32 s3, s3, 6")
    a.c("staging sentinel fill (40960 B) and counters")
    a("v_mov_b32 v32, 0x00ffffff\nv_mov_b32 v33, 0x00ffffff\nv_mov_b32 v34, 0x00ffffff\nv_mov_b32 v35, 0x00ffffff")
    a("v_lshlrev_b32 v%d, 4, v0" % t0)
    a("ds_write_b128 v%d, v[32:35] offset:%d" % (t0, A_STG))
    a("ds_write_b128 v%d, v[32:35] offset:%d" % (t0, A_STG + 16384))
    a("v_cmp_gt_u32 vcc, 512, v0")
    a("s_and_saveexec_b64 s[30:31], vcc")
    a("ds_write_b128 v%d, v[32:35] offset:%d" % (t0, A_STG + 32768))
    a("s_mov_b64 exec, s[30:31]")
    a("v_cmp_gt_u32 vcc, 257, v0")
    a("s_and_saveexec_b64 s[30:31], vcc")
    a("ds_write_b32 v%d, v%d offset:%d" % (vOff, vZ, A_CNT))
    a("s_mov_b64 exec, s[30:31]")
    a("s_waitcnt lgkmcnt(0)")
    stamp(a, 70)
    srd(a, 32, 6, 7, 3200000)
    srd(a, 36, 8, 9, 3200000)
    srd(a, 40, 28, 29, WS_USED)
    a("s_mul_i32 s44, s2, %d" % (CHUNK * 4))
    a("s_add_u32 s45, s44, 4096\ns_add_u32 s46, s44, 8192\ns_add_u32 s47, s44, 12288")
    for k in range(3):
        a("buffer_load_dword v%d, v%d, s[36:39], s%d offen" % (vD[k], vOff, 44 + k))
        a("buffer_load_dword v%d, v%d, s[32:35], s%d offen" % (vS[k], vOff, 44 + k))
    a.c("4th element: only wave 0, lanes < 53")
    a("s_mov_b64 s[48:49], 0")
    a("s_cmp_lg_u32 s3, 0")
    a("s_cbranch_scc1 A_NO4")
    a("v_cmp_gt_u32 vcc, %d, v0" % (CHUNK - 3072))
    a("s_mov_b64 s[48:49], vcc")
    a("s_mov_b64 exec, vcc")
    a("buffer_load_dword v%d, v%d, s[36:39], s47 offen" % (vD[3], vOff))
    a("buffer_load_dword v%d, v%d, s[32:35], s47 offen" % (vS[3], vOff))
    a("s_mov_b64 exec, -1")
    a.label("A_NO4")
    npt = 0
    if PT_SLOT:
        a("v_lshrrev_b32 v41, 3, v0\nv_and_b32 v42, 7, v0\nv_lshlrev_b32 v41, 15, v41\nv_lshl_add_u32 v41, v42, 4, v41")
        a("s_lshl_b32 s54, s2, 7\ns_add_u32 s55, s54, %d" % (128 * 32768))
        a("buffer_load_dwordx4 v[44:47], v41, s[40:43], s54 offen")
        a("buffer_load_dwordx4 v[48:51], v41, s[40:43], s55 offen")
        npt += 2
    if PT_OUT:
        srd(a, 72, 24, 25, N * 128)
        a("v_lshlrev_b32 v41, 4, v0")
        a("s_mul_i32 s54, s2, %d\ns_add_u32 s55, s54, 16384" % (BS * 128))
        a("buffer_load_dwordx4 v[52:55], v41, s[72:75], s54 offen")
        a("v_cmp_gt_u32 vcc, %d, v0" % ((BS * 128 - 16384) // 16))
        a("s_and_saveexec_b64 s[30:31], vcc")
        a("buffer_load_dwordx4 v[56:59], v41, s[72:75], s55 offen")
        a("s_mov_b64 exec, s[30:31]")
        npt += 2
    stamp(a, 70)
    a("s_mov_b32 s50, 85599\ns_mov_b32 s51, -%d\ns_mov_b32 s52, %d" % (BS, H))
    a("s_barrier")
    def front(k):
        a("v_mul_u32_u24 v%d, s50, v%d" % (t0, vD[k]))
        a("v_cmp_le_u32 s[%d:%d], s52, v%d" % (56 + 2 * k, 57 + 2 * k, vS[k]))
        a("v_lshrrev_b32 v%d, 24, v%d" % (vB[k], t0))
        a("v_mad_i32_i24 v%d, v%d, s51, v%d" % (t1, vB[k], vD[k]))
        a("v_cndmask_b32 v%d, v%d, v%d, s[%d:%d]" % (t2, vOne, v64k, 56 + 2 * k, 57 + 2 * k))
        a("v_lshl_or_b32 v%d, v%d, 16, v%d" % (vR[k], t1, vS[k]))
        a("v_lshlrev_b32 v%d, 2, v%d" % (t3, vB[k]))
        a("ds_add_rtn_u32 v%d, v%d, v%d offset:%d" % (vO[k], t3, t2, A_CNT))
    def back(k, lbl):
        a("v_add_u32_sdwa v%d, v%d, v%d dst_sel:DWORD dst_unused:UNUSED_PAD src0_sel:WORD_0 src1_sel:WORD_1" % (t0, vO[k], vO[k]))
        a("v_sub_u32_sdwa v%d, v%d, v%d dst_sel:DWORD dst_unused:UNUSED_PAD src0_sel:DWORD src1_sel:WORD_1" % (t1, v31, vO[k]))
        a("v_and_b32 v%d, 0xffff, v%d" % (t2, vO[k]))
        a("v_cmp_gt_u32 vcc, 32, v%d" % t0)
        a("v_cndmask_b32 v%d, v%d, v%d, s[%d:%d]" % (t2, t2, t1, 56 + 2 * k, 57 + 2 * k))
        a("v_mul_u32_u24 v%d, 160, v%d" % (t3, vB[k]))
        a("v_lshl_add_u32 v%d, v%d, 2, v%d" % (t3, t2, t3))
        a("s_andn2_b64 s[64:65], exec, vcc")
        a("s_and_saveexec_b64 s[66:67], vcc")
        a("ds_write_b32 v%d, v%d offset:%d" % (t3, vR[k], A_STG))
        a("s_mov_b64 exec, s[64:65]")
        a("s_cbranch_execz %s" % lbl)
        a.c("rare: slot full -> producer overflow list")
        a("ds_add_rtn_u32 v%d, v%d, v%d offset:%d" % (t0, vZ, vOne, A_OVFCNT))
        a("v_lshlrev_b32 v%d, 24, v%d" % (t1, vB[k]))
        a("v_or_b32 v%d, v%d, v%d" % (t1, t1, vR[k]))
        a("s_mul_i32 s68, s2, %d" % OVF_STRIDE)
        a("s_add_u32 s68, s68, %d" % WS_OVF)
        a("s_waitcnt lgkmcnt(0)")
        a("v_lshlrev_b32 v%d, 2, v%d" % (t0, t0))
        a("buffer_store_dword v%d, v%d, s[40:43], s68 offen" % (t1, t0))
        a("s_waitcnt vmcnt(0)")
        a.label(lbl)
        a("s_mov_b64 exec, s[66:67]")
    a("s_waitcnt vmcnt(%d)" % (4 + npt))
    front(0)
    a("s_waitcnt vmcnt(%d)" % (2 + npt))
    front(1)
    a("s_waitcnt vmcnt(%d)" % npt)
    stamp(a, 70)
    front(2)
    a("s_cmp_lg_u32 s3, 0")
    a("s_cbranch_scc1 A_F3")
    a("s_mov_b64 exec, s[48:49]")
    front(3)
    a("s_mov_b64 exec, -1")
    a.label("A_F3")
    a("s_waitcnt lgkmcnt(0)")
    for k in range(3):
        back(k, "A_OV%d" % k)
    a("s_cmp_lg_u32 s3, 0")
    a("s_cbranch_scc1 A_B3")
    a("s_mov_b64 exec, s[48:49]")
    back(3, "A_OV3")
    a("s_mov_b64 exec, -1")
    a.label("A_B3")
    a("s_waitcnt lgkmcnt(0)")
    stamp(a, 70)
    a("s_barrier")
    stamp(a, 70)
    a.c("readout: thread (ln = t>>3, c = t&7) rows ln and ln+128")
    a("v_lshrrev_b32 v%d, 3, v0" % t0)
    a("v_and_b32 v%d, 7, v0" % t1)
    a("v_mul_u32_u24 v%d, 160, v%d" % (t2, t0))
    a("v_lshl_add_u32 v%d, v%d, 2, v%d" % (t2, t1, t2))
    a("v_add_u32 v%d, %d, v%d" % (t3, 128 * 160, t2))
    a("ds_read2_b32 v[32:33], v%d offset0:0 offset1:8" % t2)
    a("ds_read2_b32 v[34:35], v%d offset0:16 offset1:24" % t2)
    a("ds_read2_b32 v[36:37], v%d offset0:0 offset1:8" % t3)
    a("ds_read2_b32 v[38:39], v%d offset0:16 offset1:24" % t3)
    a("ds_read_b32 v40, v%d offset:%d" % (vZ, A_OVFCNT))
    a("v_lshlrev_b32 v%d, 15, v%d" % (t0, t0))
    a("v_lshl_add_u32 v%d, v%d, 4, v%d" % (t0, t1, t0))
    a("s_lshl_b32 s44, s2, 7")
    a("s_add_u32 s44, s44, %d" % WS_SLOTS)
    a("s_add_u32 s45, s44, %d" % (128 * 32768))
    a("s_waitcnt lgkmcnt(3)")
    a("buffer_store_dwordx4 v[32:35], v%d, s[40:43], s44 offen%s" % (t0, " sc1" if A_SC1 else ""))
    a("s_waitcnt lgkmcnt(1)")
    a("buffer_store_dwordx4 v[36:39], v%d, s[40:43], s45 offen%s" % (t0, " sc1" if A_SC1 else ""))
    a("s_waitcnt lgkmcnt(0)")
    stamp(a, 70)
    a("v_cmp_eq_u32 vcc, 0, v0")
    a("s_and_saveexec_b64 s[30:31], vcc")
    a("s_cbranch_execz %s" % ("A_DUMP" if STAMPS else "A_END"))
    a("s_lshl_b32 s46, s2, 2")
    a("s_add_u32 s46, s46, %d" % WS_HDR)
    a("buffer_store_dword v40, v%d, s[40:43], s46 offen" % vZ)
    if STAMPS:
        a.label("A_DUMP")
        a("s_waitcnt vmcnt(0)")
        stamp(a, 70)
        stamp_dump(a, 40, 0, 70)
    a.label(end)
    a("s_endpgm")

vL = 1
vF16 = 2
vPAB = 3
vPBA = 4
vTR = 5
vWKa = 6
vLB = 7
vT0, vT1, vT2, vT3 = 8, 9, 10, 11
vOne = 12
vNL = 13
vNLB = 14
vZ = 15
E = list(range(16, 24))
ACC = list(range(24, 40))
S = list(range(40, 48))
EP = [48 + 2 * j for j in range(8)]
D = [64 + 8 * j for j in range(8)]
sX_IDX, sX_RAW, sWS, sDINV, sESRC, sOUT, sW1, sW2 = 32, 36, 40, 44, 48, 52, 56, 60
M = [64 + 2 * i for i in range(8)]
P = [80 + 2 * i for i in range(8)]
sT, sV, sJ, sFLAG, sRND = 96, 97, 98, 99, 100
sNODE0 = 4
sH, sHW = 5, 6
sTMP = 7

def mfma(a, d, A, B, Cz=False):
    c = "0" if Cz else "v[%d:%d]" % (d, d + 3)
    a("v_mfma_f32_16x16x32_bf16 v[%d:%d], v[%d:%d], v[%d:%d], %s" % (d, d + 3, A, A + 3, B, B + 3, c))

def trfrag(a, dst, base, s, t, areg=None):
    areg = vTR if areg is None else areg
    off = base + 32 * s * 144 + 64 * (t >> 1) + 8 * (t & 1)
    a("ds_read_b64_tr_b16 v[%d:%d], v%d offset:%d" % (dst, dst + 1, areg, off))
    a("ds_read_b64_tr_b16 v[%d:%d], v%d offset:%d" % (dst + 2, dst + 3, areg, off + 4 * 144))

def gen_B(a):
    kstart(a, KB)
    a("s_cmp_ge_u32 s2, %d" % NB)
    a("s_cbranch_scc1 B_END")
    if STAMPS:
        a("s_memrealtime s[86:87]")
        a("s_waitcnt lgkmcnt(0)")
    load_kernargs(a)
    a("v_and_b32 v%d, 63, v0" % vL)
    a("v_readfirstlane_b32 s3, v0")
    a("v_and_b32 v%d, 3, v0" % vT0)
    a("v_lshlrev_b32 v%d, 4, v%d" % (vF16, vT0))
    a("s_lshr_b32 s3, s3, 6")
    a("v_and_b32 v%d, 15, v0" % vT1)
    a("v_lshrrev_b32 v%d, 4, v%d" % (vT2, vL))
    a("v_lshl_add_u32 v%d, v%d, 2, v%d" % (vPAB, vT1, vT2))
    a("v_lshlrev_b32 v%d, 2, v%d" % (vPAB, vPAB))
    a("v_lshrrev_b32 v%d, 2, v%d" % (vT3, vL))
    a("v_lshl_add_u32 v%d, v%d, 4, v%d" % (vPBA, vT0, vT3))
    a("v_lshlrev_b32 v%d, 2, v%d" % (vPBA, vPBA))
    a("v_and_b32 v%d, 3, v%d" % (vTR, vT3))
    a("v_lshl_add_u32 v%d, v%d, 3, v%d" % (vTR, vT2, vTR))
    a("v_mul_u32_u24 v%d, 144, v%d" % (vTR, vTR))
    a("v_add_u32 v%d, v%d, v%d" % (vTR, vTR, vF16))
    a("v_lshrrev_b32 v%d, 2, v%d" % (vWKa, vT1))
    a("v_lshlrev_b32 v%d, 3, v%d" % (vWKa, vWKa))
    a("v_and_b32 v%d, 3, v%d" % (vZ, vT1))
    a("v_add_u32 v%d, v%d, v%d" % (vWKa, vWKa, vZ))
    a("v_mul_u32_u24 v%d, 144, v%d" % (vWKa, vWKa))
    a("v_lshl_add_u32 v%d, v%d, 4, v%d" % (vWKa, vT2, vWKa))
    a("v_add_u32 v%d, %d, v%d" % (vWKa, L_WK, vWKa))
    a("s_lshl_b32 s30, s3, 4")
    a("v_add_u32 v%d, s30, v%d" % (vNL, vT3))
    a("v_min_u32 v%d, %d, v%d" % (vNL, BS, vNL))
    a("v_add_u32 v%d, s30, v%d" % (vNLB, vT1))
    a("v_min_u32 v%d, %d, v%d" % (vNLB, BS, vNLB))
    a("v_mov_b32 v%d, 1" % vOne)
    a("v_mov_b32 v%d, 0" % vZ)
    for j in range(8):
        a("v_mov_b32 v%d, v%d" % (EP[j] + 1, vF16))
    a("s_waitcnt lgkmcnt(0)")
    srd(a, sWS, 28, 29, WS_USED)
    a("v_lshlrev_b32 v%d, 4, v0" % vT0)
    a("s_lshl_b32 s30, s2, 15")
    a("s_add_u32 s30, s30, %d" % WS_SLOTS)
    a("s_add_u32 s31, s30, 16384")
    a("buffer_load_dwordx4 v[%d:%d], v%d, s[%d:%d], s30 offen" % (E[0], E[3], vT0, sWS, sWS + 3))
    a("buffer_load_dwordx4 v[%d:%d], v%d, s[%d:%d], s31 offen" % (E[4], E[7], vT0, sWS, sWS + 3))
    srd(a, sX_IDX, 4, 5, N, stride=128)
    srd(a, sX_RAW, 4, 5, N * 128)
    srd(a, sDINV, 14, 15, N * 2)
    srd(a, sESRC, 10, 11, N * 16)
    srd(a, sOUT, 24, 25, N * 128)
    a.c("weights: waves 0-7 wq / wl ; waves 8-15 wk / wv")
    a("s_cmp_lt_u32 s3, 8")
    a("s_cselect_b32 s%d, s18, s20" % sW1)
    a("s_cselect_b32 s%d, s19, s21" % (sW1 + 1))
    a("s_cselect_b32 s%d, s16, s22" % sW2)
    a("s_cselect_b32 s%d, s17, s23" % (sW2 + 1))
    a("s_mov_b32 s8, %d\ns_mov_b32 s9, %d" % (L_WK, L_WV))
    a("s_cselect_b32 s8, %d, s8" % L_WQ)
    a("s_cselect_b32 s9, %d, s9" % L_WL)
    a("s_and_b32 s%d, s%d, 0xffff" % (sW1 + 1, sW1 + 1))
    a("s_and_b32 s%d, s%d, 0xffff" % (sW2 + 1, sW2 + 1))
    a("s_mov_b32 s%d, 8192\ns_mov_b32 s%d, 0x20000" % (sW1 + 2, sW1 + 3))
    a("s_mov_b32 s%d, 8192\ns_mov_b32 s%d, 0x20000" % (sW2 + 2, sW2 + 3))
    a("s_mul_i32 s%d, s2, %d" % (sNODE0, BS))
    a("s_lshl_b32 s30, s3, 4")
    a("s_add_u32 s%d, s%d, s30" % (sNODE0, sNODE0))
    a("s_mov_b32 s%d, %d" % (sH, H))
    a("s_mov_b32 s%d, %d" % (sHW, N - H))
    a("s_mov_b32 s%d, 0\ns_mov_b32 s12, 0" % sRND)
    if STAMPS:
        a("s_mov_b32 s14, s86"); _st["n"] = 1
    stamp(a)
    WA, WB = 112, 116
    XO = 96
    vES = 40
    a("v_and_b32 v%d, 511, v0" % vT1)
    a("v_lshlrev_b32 v%d, 4, v%d" % (vT2, vT1))
    a("s_cmp_ge_u32 s3, 13")
    a("s_cbranch_scc1 B_HELP0")
    a("v_lshlrev_b32 v%d, 2, v%d" % (vT3, vL))
    a("s_lshl_b32 s30, s%d, 4" % sNODE0)
    a("buffer_load_dword v%d, v%d, s[%d:%d], s30 offen" % (vES, vT3, sESRC, sESRC + 3))
    a("buffer_load_dwordx4 v[%d:%d], v%d, s[%d:%d], 0 offen" % (WA, WA + 3, vT2, sW1, sW1 + 3))
    a("buffer_load_dwordx4 v[%d:%d], v%d, s[%d:%d], 0 offen" % (WB, WB + 3, vT2, sW2, sW2 + 3))
    a("v_lshrrev_b32 v%d, 2, v%d" % (vT3, vL))
    a("v_lshl_add_u32 v%d, v%d, 7, v%d" % (vT3, vT3, vF16))
    a("s_lshl_b32 s30, s%d, 7" % sNODE0)
    a("buffer_load_dwordx4 v[%d:%d], v%d, s[%d:%d], s30 offen" % (XO, XO + 3, vT3, sX_RAW, sX_RAW + 3))
    a("buffer_load_dwordx4 v[%d:%d], v%d, s[%d:%d], s30 offen offset:64" % (XO + 4, XO + 7, vT3, sX_RAW, sX_RAW + 3))
    a("s_branch B_INIT")
    a.label("B_HELP0")
    a("buffer_load_dwordx4 v[%d:%d], v%d, s[%d:%d], 0 offen" % (WA, WA + 3, vT2, sW1, sW1 + 3))
    a("buffer_load_dwordx4 v[%d:%d], v%d, s[%d:%d], 0 offen" % (WB, WB + 3, vT2, sW2, sW2 + 3))
    a("v_lshlrev_b32 v%d, 4, v%d" % (vT3, vL))
    a("s_sub_u32 s30, s3, 13")
    a("s_mov_b32 s31, 27")
    a.label("B_DMA1")
    a("s_min_u32 s10, s30, 79")
    a("s_lshl_b32 s10, s10, 10")
    a("s_add_u32 m0, s10, %d" % L_DINV)
    a("s_add_u32 s30, s30, 3")
    a("buffer_load_dwordx4 v%d, s[%d:%d], s10 offen lds" % (vT3, sDINV, sDINV + 3))
    a("s_sub_u32 s31, s31, 1")
    a("s_cmp_lg_u32 s31, 0")
    a("s_cbranch_scc1 B_DMA1")
    a.label("B_INIT")
    a("v_mov_b32 v120, 0x%x" % (SENT | (SENT << 16)))
    a("v_mov_b32 v121, v120\nv_mov_b32 v122, v120\nv_mov_b32 v123, v120")
    a("v_cmp_gt_u32 vcc, 992, v0")
    a("s_and_saveexec_b64 s[30:31], vcc")
    a("ds_write_b128 v%d, v[120:123] offset:%d" % (vT0, L_LISTS))
    a("s_mov_b64 exec, s[30:31]")
    a("v_cmp_gt_u32 vcc, 256, v0")
    a("s_and_saveexec_b64 s[30:31], vcc")
    a("v_lshlrev_b32 v%d, 2, v0" % vT3)
    a("ds_write_b32 v%d, v%d offset:%d" % (vT3, vZ, L_CNT))
    a("s_mov_b64 exec, s[30:31]")
    a("v_lshrrev_b32 v124, 3, v%d" % vT1)
    a("v_mul_u32_u24 v124, 144, v124")
    a("v_and_b32 v125, 7, v%d" % vT1)
    a("v_lshl_add_u32 v124, v125, 4, v124")
    a("v_add_u32 v125, s9, v124")
    a("v_add_u32 v124, s8, v124")
    a("s_cmp_ge_u32 s3, 13")
    a("s_cbranch_scc1 B_HELP1")
    a("s_waitcnt vmcnt(2)")
    a("ds_write_b128 v124, v[%d:%d]" % (WA, WA + 3))
    a("ds_write_b128 v125, v[%d:%d]" % (WB, WB + 3))
    a.c("attention gathers")
    for j in range(4):
        a("v_mov_b32_dpp v%d, v%d quad_perm:[%d,%d,%d,%d] row_mask:0xf bank_mask:0xf" % (EP[j], vES, j, j, j, j))
    for j in range(4):
        a("buffer_load_dwordx4 v[%d:%d], v[%d:%d], s[%d:%d], 0 idxen offen" % (D[j], D[j] + 3, EP[j], EP[j] + 1, sX_IDX, sX_IDX + 3))
        a("buffer_load_dwordx4 v[%d:%d], v[%d:%d], s[%d:%d], 0 idxen offen offset:64" % (D[j] + 4, D[j] + 7, EP[j], EP[j] + 1, sX_IDX, sX_IDX + 3))
    a("s_branch B_BAR1")
    a.label("B_HELP1")
    a("s_waitcnt vmcnt(27)")
    a("ds_write_b128 v124, v[%d:%d]" % (WA, WA + 3))
    a("ds_write_b128 v125, v[%d:%d]" % (WB, WB + 3))
    a.label("B_BAR1")
    a("s_waitcnt lgkmcnt(0)")
    stamp(a)
    a("s_barrier")
    stamp(a)
    a("s_cmp_ge_u32 s3, 13")
    a("s_cbranch_scc1 B_BUILD_LO")
    XB, FR, D1, QB, QA = 104, 112, 24, 96, 96
    a("s_waitcnt vmcnt(8)")
    a("v_add_u32 v%d, %d, v%d" % (vT0, L_WQ, vTR))
    for k in range(8):
        a("ds_bpermute_b32 v%d, v%d, v%d" % (XB + k, vPAB, XO + k))
    for t in range(4):
        if t == 0:
            trfrag(a, FR, 0, 0, 0, vT0); trfrag(a, FR + 4, 0, 1, 0, vT0)
        if t < 3:
            o = FR + 8 * ((t + 1) & 1)
            trfrag(a, o, 0, 0, t + 1, vT0); trfrag(a, o + 4, 0, 1, t + 1, vT0)
            a("s_waitcnt lgkmcnt(4)")
        else:
            a("s_waitcnt lgkmcnt(0)")
        c = FR + 8 * (t & 1)
        mfma(a, D1 + 4 * t, c, XB, Cz=True)
        mfma(a, D1 + 4 * t, c + 4, XB + 4)
    def wkfrag(dst, ti, s):
        a("ds_read_b128 v[%d:%d], v%d offset:%d" % (dst, dst + 3, vWKa, (32 * (ti >> 1) + 4 * (ti & 1)) * 144 + 64 * s))
    a("s_nop 7")
    for t in range(4):
        a("v_cvt_pk_bf16_f32 v%d, v%d, v%d" % (QB + 2 * t, D1 + 4 * t, D1 + 4 * t + 1))
        a("v_cvt_pk_bf16_f32 v%d, v%d, v%d" % (QB + 2 * t + 1, D1 + 4 * t + 2, D1 + 4 * t + 3))
    for t in range(4):
        if t == 0:
            wkfrag(FR, 0, 0); wkfrag(FR + 4, 0, 1)
        if t < 3:
            o = FR + 8 * ((t + 1) & 1)
            wkfrag(o, t + 1, 0); wkfrag(o + 4, t + 1, 1)
            a("s_waitcnt lgkmcnt(2)")
        else:
            a("s_waitcnt lgkmcnt(0)")
        c = FR + 8 * (t & 1)
        mfma(a, D1 + 4 * t, c, QB, Cz=True)
        mfma(a, D1 + 4 * t, c + 4, QB + 4)
    a("s_nop 7")
    QPB = XB
    for t in range(4):
        a("v_cvt_pk_bf16_f32 v%d, v%d, v%d" % (QPB + 2 * t, D1 + 4 * t, D1 + 4 * t + 1))
        a("v_cvt_pk_bf16_f32 v%d, v%d, v%d" % (QPB + 2 * t + 1, D1 + 4 * t + 2, D1 + 4 * t + 3))
    for k in range(8):
        a("ds_bpermute_b32 v%d, v%d, v%d" % (QA + k, vPBA, QPB + k))
    AI = [112 + i for i in range(8)]
    RI = [120 + i for i in range(8)]
    a.label("B_BUILD_LO")
    stamp(a)
    a.c("slots must have arrived: tile waves waited vmcnt(8) after older loads; helpers waited vmcnt(27); reload path waits itself")
    a("s_mov_b32 s%d, 0" % sFLAG)
    for i in range(8):
        a("v_lshlrev_b32_sdwa v%d, 2, v%d dst_sel:DWORD dst_unused:UNUSED_PAD src0_sel:DWORD src1_sel:BYTE_2" % (AI[i], E[i]))
    def build_pass(hi):
        order = [3, 7, 2, 6, 1, 5, 0, 4] if hi else [0, 4, 1, 5, 2, 6, 3, 7]
        for i in order:
            a("v_and_b32 v%d, 0xffff, v%d" % (vT0, E[i]))
            if hi:
                a("v_subrev_u32 v%d, s%d, v%d" % (vT0, sH, vT0))
                a("v_cmp_gt_u32 s[%d:%d], s%d, v%d" % (M[i], M[i] + 1, sHW, vT0))
            else:
                a("v_cmp_gt_u32 s[%d:%d], s%d, v%d" % (M[i], M[i] + 1, sH, vT0))
        for i in order:
            a("s_mov_b64 exec, s[%d:%d]" % (M[i], M[i] + 1))
            a("ds_add_rtn_u32 v%d, v%d, v%d offset:%d" % (RI[i], AI[i], vOne, L_CNT))
        a("s_mov_b64 exec, -1")
        for n, i in enumerate(order):
            a("s_mov_b64 exec, s[%d:%d]" % (M[i], M[i] + 1))
            a("s_waitcnt lgkmcnt(7)")
            a("v_cmp_gt_u32 vcc, %d, v%d" % (CAP, RI[i]))
            a("v_lshlrev_b32 v%d, 1, v%d" % (vT0, RI[i]))
            a("v_mad_u32_u24 v%d, v%d, 20, v%d" % (vT0, AI[i], vT0))
            if hi:
                a("s_andn2_b64 s[30:31], exec, vcc")
                a("s_or_b64 s[%d:%d], s[%d:%d], s[30:31]" % (P[i], P[i] + 1, P[i], P[i] + 1))
            else:
                a("s_andn2_b64 s[%d:%d], exec, vcc" % (P[i], P[i] + 1))
            a("s_and_b64 exec, exec, vcc")
            a("ds_write_b16 v%d, v%d offset:%d" % (vT0, E[i], L_LISTS))
        a("s_mov_b64 exec, -1")
    build_pass(False)
    a("s_waitcnt lgkmcnt(0)")
    stamp(a)
    a("s_barrier")
    stamp(a)
    a("s_cmp_lt_u32 s3, 13")
    a("s_cbranch_scc1 B_BUILD_HI")
    a("s_cmp_lg_u32 s%d, 0" % sRND)
    a("s_cbranch_scc1 B_BUILD_HI")
    a("v_lshlrev_b32 v%d, 4, v%d" % (vT3, vL))
    a("s_sub_u32 s30, s3, 13")
    a("s_add_u32 s30, s30, 80")
    for k in range(6):
        a("s_lshl_b32 s10, s30, 10")
        a("s_add_u32 m0, s10, %d" % L_DINV)
        a("s_add_u32 s30, s30, 3")
        a("buffer_load_dwordx4 v%d, s[%d:%d], s10 offen lds" % (vT3, sDINV, sDINV + 3))
    a.label("B_BUILD_HI")
    build_pass(True)
    a("s_or_b64 s[30:31], s[%d:%d], s[%d:%d]" % (P[0], P[0] + 1, P[1], P[1] + 1))
    for i in range(2, 8):
        a("s_or_b64 s[30:31], s[30:31], s[%d:%d]" % (P[i], P[i] + 1))
    a("s_cmp_lg_u64 s[30:31], 0")
    a("s_cselect_b32 s%d, 1, 0" % sFLAG)
    a("s_cmp_lg_u32 s%d, 0" % sRND)
    a("s_cbranch_scc1 B_NOFULL")
    for (i, j) in ((1, 2), (5, 6)):
        a("v_and_b32 v%d, 0xffff, v%d" % (vT0, E[i]))
        a("v_and_b32 v%d, 0xffff, v%d" % (vT1, E[j]))
        a("v_max_u32 v%d, v%d, v%d" % (vT0, vT0, vT1))
        a("v_cmp_gt_u32 vcc, %d, v%d" % (N, vT0))
        a("s_bcnt1_i32_b64 s30, vcc")
        a("s_cmp_ge_u32 s30, 8")
        a("s_cselect_b32 s30, 2, 0")
        a("s_or_b32 s%d, s%d, s30" % (sFLAG, sFLAG))
    a.label("B_NOFULL")
    a("s_cmp_eq_u32 s%d, 0" % sFLAG)
    a("s_cbranch_scc1 B_NOFLAG")
    a("v_mov_b32 v%d, s%d" % (vT0, sFLAG))
    a("ds_or_b32 v%d, v%d offset:%d" % (vZ, vT0, L_FLAG))
    a.label("B_NOFLAG")
    stamp(a)
    a("s_cmp_ge_u32 s3, 13")
    a("s_cbranch_scc1 B_BAR3")
    a("s_cmp_lg_u32 s%d, 0" % sRND)
    a("s_cbranch_scc1 B_BAR3")
    a("s_waitcnt vmcnt(0) lgkmcnt(0)")
    EE = [40, 41, 42, 43]
    for j in range(4):
        a("v_dot2_f32_bf16 v%d, v%d, v%d, 0" % (EE[j], D[j], QA))
    for k in range(1, 8):
        for j in range(4):
            a("v_dot2c_f32_bf16 v%d, v%d, v%d" % (EE[j], D[j] + k, QA + k))
    a("s_nop 1")
    for j in range(4):
        a("v_add_f32_dpp v%d, v%d, v%d quad_perm:[1,0,3,2] row_mask:0xf bank_mask:0xf" % (EE[j], EE[j], EE[j]))
    a("s_nop 0")
    for j in range(4):
        a("v_add_f32_dpp v%d, v%d, v%d quad_perm:[2,3,0,1] row_mask:0xf bank_mask:0xf" % (EE[j], EE[j], EE[j]))
    import math
    c = 0.125 * math.log2(math.e)
    import struct
    cbits = struct.unpack("<I", struct.pack("<f", c))[0]
    for j in range(4):
        a("v_mul_f32 v%d, 0x%x, v%d" % (EE[j], cbits, EE[j]))
    for j in range(4):
        a("v_exp_f32 v%d, v%d" % (EE[j], EE[j]))
    a("s_nop 0")
    a("v_add_f32 v44, v%d, v%d" % (EE[0], EE[1]))
    a("v_add_f32 v45, v%d, v%d" % (EE[2], EE[3]))
    a("v_add_f32 v44, v44, v45")
    a("v_add_f32 v44, 0x%x, v44" % struct.unpack("<I", struct.pack("<f", 1e-9))[0])
    a("v_rcp_f32 v44, v44")
    a("s_nop 0")
    for j in range(4):
        a("v_mul_f32 v%d, v%d, v44" % (EE[j], EE[j]))
    AL = [44, 45, 46, 47]; AH = [104, 105, 106, 107]
    for j in range(4):
        a("v_cvt_pk_bf16_f32 v%d, v%d, v%d" % (AL[j], EE[j], vZ))
        a("v_cvt_pk_bf16_f32 v%d, v%d, v%d" % (AH[j], vZ, EE[j]))
    for k in range(8):
        a("v_dot2_f32_bf16 v%d, v%d, v%d, 0" % (ACC[2 * k], D[0] + k, AL[0]))
        a("v_dot2_f32_bf16 v%d, v%d, v%d, 0" % (ACC[2 * k + 1], D[0] + k, AH[0]))
    for j in range(1, 4):
        for k in range(8):
            a("v_dot2c_f32_bf16 v%d, v%d, v%d" % (ACC[2 * k], D[j] + k, AL[j]))
            a("v_dot2c_f32_bf16 v%d, v%d, v%d" % (ACC[2 * k + 1], D[j] + k, AH[j]))
    YB = 96
    for k in range(8):
        a("v_cvt_pk_bf16_f32 v%d, v%d, v%d" % (YB + k, ACC[2 * k], ACC[2 * k + 1]))
    a("v_and_b32 v%d, 7, v%d" % (vT0, vNL))
    a("v_lshlrev_b32 v%d, 4, v%d" % (vT0, vT0))
    a("v_xor_b32 v%d, v%d, v%d" % (vT0, vT0, vF16))
    a("v_lshl_add_u32 v%d, v%d, 7, v%d" % (vT0, vNL, vT0))
    a("v_xor_b32 v%d, 64, v%d" % (vT1, vT0))
    a("ds_write_b128 v%d, v[%d:%d] offset:%d" % (vT0, YB, YB + 3, L_Y))
    a("ds_write_b128 v%d, v[%d:%d] offset:%d" % (vT1, YB + 4, YB + 7, L_Y))
    for k in range(16):
        a("v_mov_b32 v%d, 0" % ACC[k])
    a.label("B_BAR3")
    a("s_waitcnt vmcnt(0) lgkmcnt(0)")
    stamp(a)
    a("s_barrier")
    stamp(a)
    a("ds_read_b32 v%d, v%d offset:%d" % (vT0, vZ, L_FLAG))
    a("v_lshlrev_b32 v%d, 2, v%d" % (vT1, vNL))
    a("ds_read_b32 v%d, v%d offset:%d" % (vT1, vT1, L_CNT))
    a("s_waitcnt lgkmcnt(0)")
    a("v_readfirstlane_b32 s%d, v%d" % (sFLAG, vT0))
    a("s_nop 0")
    a("s_and_b32 s30, s%d, 1" % sFLAG)
    a("s_cbranch_scc0 B_NOSPILL")
    a.c("rare: keep only pending entries and spill them")
    a("v_mov_b32 v%d, 0x00ffffff" % vT2)
    for i in range(8):
        a("v_cndmask_b32 v%d, v%d, v%d, s[%d:%d]" % (E[i], vT2, E[i], P[i], P[i] + 1))
    a("v_lshlrev_b32 v%d, 4, v0" % vT2)
    a("s_lshl_b32 s30, s2, 15")
    a("s_add_u32 s30, s30, %d" % WS_SPILL)
    a("s_add_u32 s31, s30, 16384")
    a("buffer_store_dwordx4 v[%d:%d], v%d, s[%d:%d], s30 offen" % (E[0], E[3], vT2, sWS, sWS + 3))
    a("buffer_store_dwordx4 v[%d:%d], v%d, s[%d:%d], s31 offen" % (E[4], E[7], vT2, sWS, sWS + 3))
    a("s_waitcnt vmcnt(0)")
    a.label("B_NOSPILL")
    a("s_cmp_ge_u32 s3, 13")
    a("s_cbranch_scc1 B_GDONE")
    a("v_min_u32 v%d, %d, v%d" % (vT1, CAP, vT1))
    a("s_nop 1")
    a("v_max_u32_dpp v%d, v%d, v%d row_shr:4 row_mask:0xf bank_mask:0xf" % (vT1, vT1, vT1))
    a("s_nop 1")
    a("v_max_u32_dpp v%d, v%d, v%d row_shr:8 row_mask:0xf bank_mask:0xf" % (vT1, vT1, vT1))
    a("s_nop 1")
    a("v_readlane_b32 s8, v%d, 15\nv_readlane_b32 s9, v%d, 31\nv_readlane_b32 s10, v%d, 47\nv_readlane_b32 s11, v%d, 63" % (vT1, vT1, vT1, vT1))
    a("s_nop 0")
    a("s_max_u32 s8, s8, s9\ns_max_u32 s10, s10, s11\ns_max_u32 s8, s8, s10")
    a("s_max_u32 s%d, s8, 8" % sT)
    a("s_sub_u32 s%d, 0, s%d" % (sJ, sT))
    a("s_and_b32 s%d, s%d, 7" % (sJ, sJ))
    a("v_mul_u32_u24 v%d, 80, v%d" % (vLB, vNL))
    a("s_lshl_b32 s8, s%d, 1" % sJ)
    a("s_sub_u32 s8, %d, s8" % L_LISTS)
    a("v_add_u32 v%d, s8, v%d" % (vLB, vLB))
    for j in range(8):
        a("s_cmp_gt_u32 s%d, %d" % (sJ, j))
        a("s_cselect_b32 s9, 16, 0")
        a("v_add_u32 v%d, s9, v%d" % (vT0, vLB))
        a("ds_read_u16 v%d, v%d offset:%d" % (EP[j], vT0, 2 * j))
    a("s_mov_b32 s%d, 0" % sV)
    a("s_waitcnt lgkmcnt(0)")
    stamp(a)
    for j in range(1, 8):
        a("s_cmp_eq_u32 s%d, %d" % (sJ, j))
        a("s_cbranch_scc1 B_POS%d" % j)
    def consume(j):
        a("v_lshlrev_b32 v%d, 16, v%d" % (vT0, S[j]))
        for k in range(8):
            a("v_dot2c_f32_bf16 v%d, v%d, v%d" % (ACC[2 * k], D[j] + k, S[j]))
        for k in range(8):
            a("v_dot2c_f32_bf16 v%d, v%d, v%d" % (ACC[2 * k + 1], D[j] + k, vT0))
    for j in range(8):
        a.label("B_POS%d" % j)
        a("s_cmp_lt_u32 s%d, 8" % sV)
        a("s_cbranch_scc1 B_ISS%d" % j)
        a("s_waitcnt vmcnt(14) lgkmcnt(14)")
        consume(j)
        a.label("B_ISS%d" % j)
        a("v_lshlrev_b32 v%d, 1, v%d" % (vT1, EP[j]))
        a("buffer_load_dwordx4 v[%d:%d], v[%d:%d], s[%d:%d], 0 idxen offen" % (D[j], D[j] + 3, EP[j], EP[j] + 1, sX_IDX, sX_IDX + 3))
        a("buffer_load_dwordx4 v[%d:%d], v[%d:%d], s[%d:%d], 0 idxen offen offset:64" % (D[j] + 4, D[j] + 7, EP[j], EP[j] + 1, sX_IDX, sX_IDX + 3))
        a("ds_read_u16 v%d, v%d offset:%d" % (S[j], vT1, L_DINV))
        a("ds_read_u16 v%d, v%d offset:%d" % (EP[j], vLB, 16 + 2 * j))
        a("s_add_u32 s%d, s%d, 1" % (sV, sV))
    a("v_add_u32 v%d, 16, v%d" % (vLB, vLB))
    a("s_cmp_lt_u32 s%d, s%d" % (sV, sT))
    a("s_cbranch_scc1 B_POS0")
    a("s_waitcnt lgkmcnt(0)")
    for j in range(8):
        a("s_waitcnt vmcnt(%d)" % (14 - 2 * j))
        consume(j)
    a.label("B_GDONE")
    stamp(a)
    a("s_or_b32 s30, s%d, s12" % sFLAG)
    a("s_cbranch_scc1 B_RARE")
    a.label("B_EPI")
    a("s_cmp_ge_u32 s3, 13")
    a("s_cbranch_scc1 %s" % ("B_DUMP" if STAMPS else "B_END"))
    AG, AGB, YBB, FR, DO, OB, OA = 96, 104, 112, 64, 80, 96, 104
    a("s_mul_i32 s8, s2, %d" % BS)
    a("v_add_u32 v%d, s8, v%d" % (vT2, vNL))
    a("v_min_u32 v%d, %d, v%d" % (vT0, N, vT2))
    a("v_lshlrev_b32 v%d, 1, v%d" % (vT0, vT0))
    a("ds_read_u16 v%d, v%d offset:%d" % (vT0, vT0, L_DINV))
    a("v_lshrrev_b32 v%d, 4, v%d" % (vT1, vL))
    a("v_and_b32 v%d, 7, v%d" % (vT3, vNLB))
    a("v_xor_b32 v%d, v%d, v%d" % (vT1, vT1, vT3))
    a("v_lshlrev_b32 v%d, 4, v%d" % (vT1, vT1))
    a("v_lshl_add_u32 v%d, v%d, 7, v%d" % (vT1, vNLB, vT1))
    a("v_xor_b32 v%d, 64, v%d" % (vT3, vT1))
    a("ds_read_b128 v[%d:%d], v%d offset:%d" % (YBB, YBB + 3, vT1, L_Y))
    a("ds_read_b128 v[%d:%d], v%d offset:%d" % (YBB + 4, YBB + 7, vT3, L_Y))
    a("s_waitcnt lgkmcnt(2)")
    a("v_lshlrev_b32 v%d, 16, v%d" % (vT0, vT0))
    for k in range(16):
        a("v_mul_f32 v%d, v%d, v%d" % (ACC[k], ACC[k], vT0))
    for k in range(8):
        a("v_cvt_pk_bf16_f32 v%d, v%d, v%d" % (AG + k, ACC[2 * k], ACC[2 * k + 1]))
    for k in range(8):
        a("ds_bpermute_b32 v%d, v%d, v%d" % (AGB + k, vPAB, AG + k))
    for t in range(4):
        o = FR if (t & 1) == 0 else 40
        trfrag(a, o, L_WL, 0, t); trfrag(a, o + 4, L_WL, 1, t)
        trfrag(a, o + 8, L_WV, 0, t); trfrag(a, o + 12, L_WV, 1, t)
        a("s_waitcnt lgkmcnt(0)")
        mfma(a, DO + 4 * t, o, AGB, Cz=True)
        mfma(a, DO + 4 * t, o + 4, AGB + 4)
        mfma(a, DO + 4 * t, o + 8, YBB)
        mfma(a, DO + 4 * t, o + 12, YBB + 4)
    a("s_nop 7")
    for t in range(4):
        a("v_cvt_pk_bf16_f32 v%d, v%d, v%d" % (OB + 2 * t, DO + 4 * t, DO + 4 * t + 1))
        a("v_cvt_pk_bf16_f32 v%d, v%d, v%d" % (OB + 2 * t + 1, DO + 4 * t + 2, DO + 4 * t + 3))
    for k in range(8):
        a("ds_bpermute_b32 v%d, v%d, v%d" % (OA + k, vPBA, OB + k))
    a("v_lshl_add_u32 v%d, v%d, 7, v%d" % (vT2, vT2, vF16))
    a("v_cmp_gt_u32 vcc, %d, v%d" % (BS, vNL))
    a("v_mov_b32 v%d, 0x7fffff00" % vT0)
    a("s_nop 0")
    a("v_cndmask_b32 v%d, v%d, v%d, vcc" % (vT2, vT0, vT2))
    a("s_waitcnt lgkmcnt(0)")
    sfx = " sc1" if B_SC1 else ""
    a("buffer_store_dwordx4 v[%d:%d], v%d, s[%d:%d], 0 offen%s" % (OA, OA + 3, vT2, sOUT, sOUT + 3, sfx))
    a("buffer_store_dwordx4 v[%d:%d], v%d, s[%d:%d], 0 offen offset:64%s" % (OA + 4, OA + 7, vT2, sOUT, sOUT + 3, sfx))
    if STAMPS:
        stamp(a)
        a("s_waitcnt vmcnt(0)")
        stamp(a)
        a.label("B_DUMP")
        stamp_dump(a, sWS, 1)
    a.label("B_END")
    a("s_endpgm")
    a.label("B_RARE")
    a("s_barrier")
    a("s_add_u32 s%d, s%d, 1" % (sRND, sRND))
    a("s_cmp_eq_u32 s%d, 1" % sRND)
    a("s_cbranch_scc0 B_R1")
    a("s_and_b32 s12, s%d, 2" % sFLAG)
    a("s_mov_b32 s13, 0")
    a.label("B_R1")
    a("s_and_b32 s30, s%d, 1" % sFLAG)
    a("s_cbranch_scc0 B_RNEXT")
    a.c("reload pending entries")
    a("v_lshlrev_b32 v%d, 4, v0" % vT2)
    a("s_lshl_b32 s30, s2, 15")
    a("s_add_u32 s30, s30, %d" % WS_SPILL)
    a("s_add_u32 s31, s30, 16384")
    a("buffer_load_dwordx4 v[%d:%d], v%d, s[%d:%d], s30 offen sc1" % (E[0], E[3], vT2, sWS, sWS + 3))
    a("buffer_load_dwordx4 v[%d:%d], v%d, s[%d:%d], s31 offen sc1" % (E[4], E[7], vT2, sWS, sWS + 3))
    a("s_branch B_RINIT")
    a.label("B_RNEXT")
    a("s_cmp_eq_u32 s12, 0")
    a("s_cbranch_scc1 B_EPI")
    a("s_cmp_lg_u32 s13, 0")
    a("s_cbranch_scc1 B_RHAVE")
    a.c("load the 256 overflow headers; every wave builds the same 4 masks s[14:21]")
    a("s_mov_b32 s13, 1")
    a("v_lshlrev_b32 v%d, 2, v%d" % (vT2, vL))
    a("s_mov_b32 s30, %d" % WS_HDR)
    a("buffer_load_dword v%d, v%d, s[%d:%d], s30 offen" % (112, vT2, sWS, sWS + 3))
    a("buffer_load_dword v%d, v%d, s[%d:%d], s30 offen offset:256" % (113, vT2, sWS, sWS + 3))
    a("buffer_load_dword v%d, v%d, s[%d:%d], s30 offen offset:512" % (114, vT2, sWS, sWS + 3))
    a("buffer_load_dword v%d, v%d, s[%d:%d], s30 offen offset:768" % (115, vT2, sWS, sWS + 3))
    a("s_waitcnt vmcnt(0)")
    for q in range(4):
        a("v_cmp_ne_u32 s[%d:%d], 0, v%d" % (14 + 2 * q, 15 + 2 * q, 112 + q))
    a.label("B_RHAVE")
    a.c("find next producer with overflow")
    for q in range(4):
        a("s_cmp_lg_u64 s[%d:%d], 0" % (14 + 2 * q, 15 + 2 * q))
        a("s_cbranch_scc1 B_RQ%d" % q)
    a("s_branch B_EPI")
    for q in range(4):
        a.label("B_RQ%d" % q)
        a("s_ff1_i32_b64 s22, s[%d:%d]" % (14 + 2 * q, 15 + 2 * q))
        a("s_bitset0_b64 s[%d:%d], s22" % (14 + 2 * q, 15 + 2 * q))
        a("s_add_u32 s22, s22, %d" % (64 * q))
        a("s_branch B_RGOT")
    a.label("B_RGOT")
    a.c("producer s22: load its count and list; keep entries of my bucket")
    a("s_lshl_b32 s30, s22, 2")
    a("s_add_u32 s30, s30, %d" % WS_HDR)
    a("buffer_load_dword v%d, v%d, s[%d:%d], s30 offen" % (vT3, vZ, sWS, sWS + 3))
    a("s_mul_i32 s30, s22, %d" % OVF_STRIDE)
    a("s_add_u32 s30, s30, %d" % WS_OVF)
    a("v_lshlrev_b32 v%d, 2, v0" % vT2)
    for k in range(4):
        a("s_add_u32 s31, s30, %d" % (4096 * k))
        a("buffer_load_dword v%d, v%d, s[%d:%d], s31 offen" % (E[k], vT2, sWS, sWS + 3))
    a("s_waitcnt vmcnt(0)")
    a("v_and_b32 v%d, 0xffffff, v%d" % (vT3, vT3))
    a("v_mov_b32 v%d, 0x00ffffff" % vT1)
    for k in range(4):
        a("v_add_u32 v%d, %d, v0" % (vT0, 1024 * k))
        a("v_cmp_lt_u32 vcc, v%d, v%d" % (vT0, vT3))
        a("v_lshrrev_b32 v%d, 24, v%d" % (vT0, E[k]))
        a("v_cmp_eq_u32 s[30:31], s2, v%d" % vT0)
        a("s_and_b64 vcc, vcc, s[30:31]")
        a("s_nop 0")
        a("v_cndmask_b32 v%d, v%d, v%d, vcc" % (E[k], vT1, E[k]))
    for k in range(4, 8):
        a("v_mov_b32 v%d, v%d" % (E[k], vT1))
    a.label("B_RINIT")
    a.c("re-init lists / counters / flag")
    a("v_mov_b32 v120, 0x%x" % (SENT | (SENT << 16)))
    a("v_mov_b32 v121, v120\nv_mov_b32 v122, v120\nv_mov_b32 v123, v120")
    a("v_lshlrev_b32 v%d, 4, v0" % vT0)
    a("v_cmp_gt_u32 vcc, 992, v0")
    a("s_and_saveexec_b64 s[30:31], vcc")
    a("ds_write_b128 v%d, v[120:123] offset:%d" % (vT0, L_LISTS))
    a("s_mov_b64 exec, s[30:31]")
    a("v_cmp_gt_u32 vcc, 256, v0")
    a("s_and_saveexec_b64 s[30:31], vcc")
    a("v_lshlrev_b32 v%d, 2, v0" % vT3)
    a("ds_write_b32 v%d, v%d offset:%d" % (vT3, vZ, L_CNT))
    a("s_mov_b64 exec, s[30:31]")
    a("s_waitcnt vmcnt(0) lgkmcnt(0)")
    a("s_barrier")
    a("s_branch B_BUILD_LO")

def main():
    a = Asm()
    header(a)
    gen_A(a)
    gen_B(a)
    a('.section .rodata,"a"')
    a(".p2align 6")
    kdesc(a, KA, 64, 96)
    a(".p2align 6")
    kdesc(a, KB, 128, 102)
    txt = a.text()
    out = sys.argv[1] if len(sys.argv) > 1 else "k2.s"
    open(out, "w").write(txt)
    pr = lint(txt)
    print("wrote", out, "lines", txt.count("\n"), "hazards", len(pr))

main()
```

```python
import sys
from asmlib import Asm, lint

N = 50000
BS = 196
NB = 256
CHUNK = 3125
H = 25000
CAP = 40
SENT = 50000
WS_SLOTS = 0
WS_OVF = 8388608
OVF_STRIDE = 12544
WS_HDR = 12 * 1024 * 1024
WS_SPILL = 16 * 1024 * 1024
WS_USED = 24 * 1024 * 1024
L_LISTS = 0
L_CNT = 15872
L_FLAG = L_CNT + 1020
L_Y = 16896
L_WL = 42240
L_WV = 51456
L_MISC = 60672
L_DINV = 63488
L_WQ = L_DINV + 81920
L_WK = L_WQ + 9216
L_TOTAL_B = 163840
A_STG = 0
A_CNT = 40960
A_OVFCNT = 41984
L_TOTAL_A = 98304

import os
STAMPS = int(os.environ.get("STAMPS", "0"))
WS_DIAG = 32 * 1024 * 1024
if STAMPS: WS_USED = 40 * 1024 * 1024
_st = {"n": 0}
def stamp(a, base=14):
    if not STAMPS: return
    i = _st["n"]; _st["n"] += 1
    a("s_memrealtime s[30:31]")
    a("s_waitcnt lgkmcnt(0)")
    a("s_mov_b32 s%d, s30" % (base + i))
def stamp_dump(a, ws, which, base=14):
    if not STAMPS: return
    n = _st["n"]; _st["n"] = 0
    if STAMPS == 2:
        lbl = "DBG_SKIP%d" % which
        a("s_cmp_lg_u32 s2, 0")
        a("s_cbranch_scc1 %s" % lbl)
        a("s_cmp_lg_u32 s3, %d" % (0 if which == 0 else 12))
        a("s_cbranch_scc1 %s" % lbl)
        a("s_mov_b64 exec, -1")
        a("v_and_b32 v9, 63, v0")
        a("v_lshlrev_b32 v9, 2, v9")
        a("s_mov_b32 s30, %d" % WS_DIAG)
        if which == 0:
            a("v_mov_b32 v8, 0")
            a("v_writelane_b32 v8, s%d, 0" % base)
            a("v_writelane_b32 v8, s%d, 1" % (base + n - 1))
            a("v_cmp_gt_u32 vcc, 8, v9")
            a("s_and_saveexec_b64 s[12:13], vcc")
            a("buffer_store_dword v8, v9, s[%d:%d], s30 offen" % (ws, ws + 3))
        else:
            a("v_mov_b32 v10, 0")
            a("buffer_load_dword v11, v10, s[%d:%d], s30 offen" % (ws, ws + 3))
            a("buffer_load_dword v12, v10, s[%d:%d], s30 offen offset:4" % (ws, ws + 3))
            a("s_load_dwordx2 s[4:5], s[0:1], 88")
            a("s_waitcnt lgkmcnt(0) vmcnt(0)")
            a("s_and_b32 s5, s5, 0xffff\ns_mov_b32 s6, 256\ns_mov_b32 s7, 0x20000")
            a("v_mov_b32 v8, v12")
            for q in range(n):
                a("v_writelane_b32 v8, s%d, %d" % (base + q, q + 1))
            a("v_sub_u32 v8, v8, v11")
            a("v_cmp_gt_u32 vcc, %d, v9" % (4 * (n + 1)))
            a("s_and_saveexec_b64 s[12:13], vcc")
            a("buffer_store_dword v8, v9, s[4:7], 0 offen")
        a.label(lbl)
        return
    a("s_mov_b64 exec, -1")
    a("v_mov_b32 v8, 0")
    for i in range(n):
        a("v_writelane_b32 v8, s%d, %d" % (base + i, i))
    a("v_and_b32 v9, 63, v0")
    a("v_lshlrev_b32 v9, 2, v9")
    a("s_lshl_b32 s30, s2, 4")
    a("s_add_u32 s30, s30, s3")
    a("s_lshl_b32 s30, s30, 6")
    a("s_add_u32 s30, s30, %d" % (WS_DIAG + which * 1024 * 1024))
    a("v_cmp_gt_u32 vcc, 16, v9" if False else "v_cmp_gt_u32 vcc, 64, v9")
    a("s_and_saveexec_b64 s[12:13], vcc")
    a("buffer_store_dword v8, v9, s[%d:%d], s30 offen" % (ws, ws + 3))

DELAY = int(os.environ.get("DELAY", "0"))
A_SC1 = int(os.environ.get("A_SC1", "0"))
B_SC1 = int(os.environ.get("B_SC1", "0"))
PT_OUT = int(os.environ.get("PT_OUT", "0"))
PT_SLOT = int(os.environ.get("PT_SLOT", "0"))
KA = "exph_bin_kernel"
KB = "exph_main_kernel"

def header(a):
    a.lines.append("; Exphormer graph layer: kernel 1 bins the local edges by destination bucket, kernel 2 aggregates + attention + projection")
    a.lines.append("; @launch kernel=%s grid=(256,1,1) block=(1024,1,1) lds=%d" % (KA, L_TOTAL_A))
    a.lines.append("; @launch kernel=%s grid=(256,1,1) block=(1024,1,1) lds=%d" % (KB, L_TOTAL_B))
    a('.amdgcn_target "amdgcn-amd-amdhsa--gfx950"')
    a(".text")

def kstart(a, name):
    a(".globl %s" % name)
    a(".p2align 8")
    a(".type %s,@function" % name)
    a.label(name)

def kdesc(a, name, vg, sg):
    a(".amdhsa_kernel %s" % name)
    a("  .amdhsa_next_free_vgpr %d" % vg)
    a("  .amdhsa_next_free_sgpr %d" % sg)
    a("  .amdhsa_accum_offset %d" % vg)
    a("  .amdhsa_group_segment_fixed_size 0")
    a("  .amdhsa_kernarg_size 104")
    a("  .amdhsa_user_sgpr_count 2")
    a("  .amdhsa_user_sgpr_kernarg_segment_ptr 1")
    a("  .amdhsa_system_sgpr_workgroup_id_x 1")
    a(".end_amdhsa_kernel")

def srd(a, s, lo, hi, nrec, stride=0):
    a("s_mov_b32 s%d, s%d" % (s, lo))
    if stride:
        a("s_and_b32 s%d, s%d, 0xffff" % (s + 1, hi))
        a("s_or_b32 s%d, s%d, 0x%x" % (s + 1, s + 1, stride << 16))
    else:
        a("s_and_b32 s%d, s%d, 0xffff" % (s + 1, hi))
    a("s_mov_b32 s%d, %d" % (s + 2, nrec))
    a("s_mov_b32 s%d, 0x20000" % (s + 3))

def load_kernargs(a):
    a("s_load_dwordx16 s[4:19], s[0:1], 0")
    a("s_load_dwordx8 s[20:27], s[0:1], 64")
    a("s_load_dwordx2 s[28:29], s[0:1], 96")

def gen_A(a):
    kstart(a, KA)
    end = "A_END"
    a("s_cmp_ge_u32 s2, %d" % NB)
    a("s_cbranch_scc1 %s" % end)
    stamp(a, 70)
    load_kernargs(a)
    vOff, vOne, v64k, v31, vZ = 1, 2, 3, 4, 5
    vD = [8, 9, 10, 11]; vS = [12, 13, 14, 15]
    vB = [16, 17, 18, 19]; vR = [20, 21, 22, 23]; vO = [24, 25, 26, 27]
    t0, t1, t2, t3 = 28, 29, 30, 31
    a("v_lshlrev_b32 v%d, 2, v0" % vOff)
    a("v_readfirstlane_b32 s3, v0")
    a("v_mov_b32 v%d, 1" % vOne)
    a("v_mov_b32 v%d, 0x10000" % v64k)
    a("v_mov_b32 v%d, 31" % v31)
    a("v_mov_b32 v%d, 0" % vZ)
    a("s_lshr_b32 s3, s3, 6")
    a.c("staging sentinel fill (40960 B) and counters")
    a("v_mov_b32 v32, 0x00ffffff\nv_mov_b32 v33, 0x00ffffff\nv_mov_b32 v34, 0x00ffffff\nv_mov_b32 v35, 0x00ffffff")
    a("v_lshlrev_b32 v%d, 4, v0" % t0)
    a("ds_write_b128 v%d, v[32:35] offset:%d" % (t0, A_STG))
    a("ds_write_b128 v%d, v[32:35] offset:%d" % (t0, A_STG + 16384))
    a("v_cmp_gt_u32 vcc, 512, v0")
    a("s_and_saveexec_b64 s[30:31], vcc")
    a("ds_write_b128 v%d, v[32:35] offset:%d" % (t0, A_STG + 32768))
    a("s_mov_b64 exec, s[30:31]")
    a("v_cmp_gt_u32 vcc, 257, v0")
    a("s_and_saveexec_b64 s[30:31], vcc")
    a("ds_write_b32 v%d, v%d offset:%d" % (vOff, vZ, A_CNT))
    a("s_mov_b64 exec, s[30:31]")
    a("s_waitcnt lgkmcnt(0)")
    stamp(a, 70)
    srd(a, 32, 6, 7, 3200000)
    srd(a, 36, 8, 9, 3200000)
    srd(a, 40, 28, 29, WS_USED)
    a("s_mul_i32 s44, s2, %d" % (CHUNK * 4))
    a("s_add_u32 s45, s44, 4096\ns_add_u32 s46, s44, 8192\ns_add_u32 s47, s44, 12288")
    for k in range(3):
        a("buffer_load_dword v%d, v%d, s[36:39], s%d offen" % (vD[k], vOff, 44 + k))
        a("buffer_load_dword v%d, v%d, s[32:35], s%d offen" % (vS[k], vOff, 44 + k))
    a.c("4th element: only wave 0, lanes < 53")
    a("s_mov_b64 s[48:49], 0")
    a("s_cmp_lg_u32 s3, 0")
    a("s_cbranch_scc1 A_NO4")
    a("v_cmp_gt_u32 vcc, %d, v0" % (CHUNK - 3072))
    a("s_mov_b64 s[48:49], vcc")
    a("s_mov_b64 exec, vcc")
    a("buffer_load_dword v%d, v%d, s[36:39], s47 offen" % (vD[3], vOff))
    a("buffer_load_dword v%d, v%d, s[32:35], s47 offen" % (vS[3], vOff))
    a("s_mov_b64 exec, -1")
    a.label("A_NO4")
    npt = 0
    if PT_SLOT:
        a("v_lshrrev_b32 v41, 3, v0\nv_and_b32 v42, 7, v0\nv_lshlrev_b32 v41, 15, v41\nv_lshl_add_u32 v41, v42, 4, v41")
        a("s_lshl_b32 s54, s2, 7\ns_add_u32 s55, s54, %d" % (128 * 32768))
        a("buffer_load_dwordx4 v[44:47], v41, s[40:43], s54 offen")
        a("buffer_load_dwordx4 v[48:51], v41, s[40:43], s55 offen")
        npt += 2
    if PT_OUT:
        srd(a, 72, 24, 25, N * 128)
        a("v_lshlrev_b32 v41, 4, v0")
        a("s_mul_i32 s54, s2, %d\ns_add_u32 s55, s54, 16384" % (BS * 128))
        a("buffer_load_dwordx4 v[52:55], v41, s[72:75], s54 offen")
        a("v_cmp_gt_u32 vcc, %d, v0" % ((BS * 128 - 16384) // 16))
        a("s_and_saveexec_b64 s[30:31], vcc")
        a("buffer_load_dwordx4 v[56:59], v41, s[72:75], s55 offen")
        a("s_mov_b64 exec, s[30:31]")
        npt += 2
    stamp(a, 70)
    a("s_mov_b32 s50, 85599\ns_mov_b32 s51, -%d\ns_mov_b32 s52, %d" % (BS, H))
    a("s_barrier")
    def front(k):
        a("v_mul_u32_u24 v%d, s50, v%d" % (t0, vD[k]))
        a("v_cmp_le_u32 s[%d:%d], s52, v%d" % (56 + 2 * k, 57 + 2 * k, vS[k]))
        a("v_lshrrev_b32 v%d, 24, v%d" % (vB[k], t0))
        a("v_mad_i32_i24 v%d, v%d, s51, v%d" % (t1, vB[k], vD[k]))
        a("v_cndmask_b32 v%d, v%d, v%d, s[%d:%d]" % (t2, vOne, v64k, 56 + 2 * k, 57 + 2 * k))
        a("v_lshl_or_b32 v%d, v%d, 16, v%d" % (vR[k], t1, vS[k]))
        a("v_lshlrev_b32 v%d, 2, v%d" % (t3, vB[k]))
        a("ds_add_rtn_u32 v%d, v%d, v%d offset:%d" % (vO[k], t3, t2, A_CNT))
    def back(k, lbl):
        a("v_add_u32_sdwa v%d, v%d, v%d dst_sel:DWORD dst_unused:UNUSED_PAD src0_sel:WORD_0 src1_sel:WORD_1" % (t0, vO[k], vO[k]))
        a("v_sub_u32_sdwa v%d, v%d, v%d dst_sel:DWORD dst_unused:UNUSED_PAD src0_sel:DWORD src1_sel:WORD_1" % (t1, v31, vO[k]))
        a("v_and_b32 v%d, 0xffff, v%d" % (t2, vO[k]))
        a("v_cmp_gt_u32 vcc, 32, v%d" % t0)
        a("v_cndmask_b32 v%d, v%d, v%d, s[%d:%d]" % (t2, t2, t1, 56 + 2 * k, 57 + 2 * k))
        a("v_mul_u32_u24 v%d, 160, v%d" % (t3, vB[k]))
        a("v_lshl_add_u32 v%d, v%d, 2, v%d" % (t3, t2, t3))
        a("s_andn2_b64 s[64:65], exec, vcc")
        a("s_and_saveexec_b64 s[66:67], vcc")
        a("ds_write_b32 v%d, v%d offset:%d" % (t3, vR[k], A_STG))
        a("s_mov_b64 exec, s[64:65]")
        a("s_cbranch_execz %s" % lbl)
        a.c("rare: slot full -> producer overflow list")
        a("ds_add_rtn_u32 v%d, v%d, v%d offset:%d" % (t0, vZ, vOne, A_OVFCNT))
        a("v_lshlrev_b32 v%d, 24, v%d" % (t1, vB[k]))
        a("v_or_b32 v%d, v%d, v%d" % (t1, t1, vR[k]))
        a("s_mul_i32 s68, s2, %d" % OVF_STRIDE)
        a("s_add_u32 s68, s68, %d" % WS_OVF)
        a("s_waitcnt lgkmcnt(0)")
        a("v_lshlrev_b32 v%d, 2, v%d" % (t0, t0))
        a("buffer_store_dword v%d, v%d, s[40:43], s68 offen" % (t1, t0))
        a("s_waitcnt vmcnt(0)")
        a.label(lbl)
        a("s_mov_b64 exec, s[66:67]")
    a("s_waitcnt vmcnt(%d)" % (4 + npt))
    front(0)
    a("s_waitcnt vmcnt(%d)" % (2 + npt))
    front(1)
    a("s_waitcnt vmcnt(%d)" % npt)
    stamp(a, 70)
    front(2)
    a("s_cmp_lg_u32 s3, 0")
    a("s_cbranch_scc1 A_F3")
    a("s_mov_b64 exec, s[48:49]")
    front(3)
    a("s_mov_b64 exec, -1")
    a.label("A_F3")
    a("s_waitcnt lgkmcnt(0)")
    for k in range(3):
        back(k, "A_OV%d" % k)
    a("s_cmp_lg_u32 s3, 0")
    a("s_cbranch_scc1 A_B3")
    a("s_mov_b64 exec, s[48:49]")
    back(3, "A_OV3")
    a("s_mov_b64 exec, -1")
    a.label("A_B3")
    a("s_waitcnt lgkmcnt(0)")
    stamp(a, 70)
    a("s_barrier")
    stamp(a, 70)
    a.c("readout: thread (ln = t>>3, c = t&7) rows ln and ln+128")
    a("v_lshrrev_b32 v%d, 3, v0" % t0)
    a("v_and_b32 v%d, 7, v0" % t1)
    a("v_mul_u32_u24 v%d, 160, v%d" % (t2, t0))
    a("v_lshl_add_u32 v%d, v%d, 2, v%d" % (t2, t1, t2))
    a("v_add_u32 v%d, %d, v%d" % (t3, 128 * 160, t2))
    a("ds_read2_b32 v[32:33], v%d offset0:0 offset1:8" % t2)
    a("ds_read2_b32 v[34:35], v%d offset0:16 offset1:24" % t2)
    a("ds_read2_b32 v[36:37], v%d offset0:0 offset1:8" % t3)
    a("ds_read2_b32 v[38:39], v%d offset0:16 offset1:24" % t3)
    a("ds_read_b32 v40, v%d offset:%d" % (vZ, A_OVFCNT))
    a("v_lshlrev_b32 v%d, 15, v%d" % (t0, t0))
    a("v_lshl_add_u32 v%d, v%d, 4, v%d" % (t0, t1, t0))
    a("s_lshl_b32 s44, s2, 7")
    a("s_add_u32 s44, s44, %d" % WS_SLOTS)
    a("s_add_u32 s45, s44, %d" % (128 * 32768))
    a("s_waitcnt lgkmcnt(3)")
    a("buffer_store_dwordx4 v[32:35], v%d, s[40:43], s44 offen%s" % (t0, " sc1" if A_SC1 else ""))
    a("s_waitcnt lgkmcnt(1)")
    a("buffer_store_dwordx4 v[36:39], v%d, s[40:43], s45 offen%s" % (t0, " sc1" if A_SC1 else ""))
    a("s_waitcnt lgkmcnt(0)")
    stamp(a, 70)
    a("v_cmp_eq_u32 vcc, 0, v0")
    a("s_and_saveexec_b64 s[30:31], vcc")
    a("s_cbranch_execz %s" % ("A_DUMP" if STAMPS else "A_END"))
    a("s_lshl_b32 s46, s2, 2")
    a("s_add_u32 s46, s46, %d" % WS_HDR)
    a("buffer_store_dword v40, v%d, s[40:43], s46 offen" % vZ)
    if STAMPS:
        a.label("A_DUMP")
        a("s_waitcnt vmcnt(0)")
        stamp(a, 70)
        stamp_dump(a, 40, 0, 70)
    a.label(end)
    a("s_endpgm")

vL = 1
vF16 = 2
vPAB = 3
vPBA = 4
vTR = 5
vWKa = 6
vLB = 7
vT0, vT1, vT2, vT3 = 8, 9, 10, 11
vOne = 12
vNL = 13
vNLB = 14
vZ = 15
E = list(range(16, 24))
ACC = list(range(24, 40))
S = list(range(40, 48))
EP = [48 + 2 * j for j in range(8)]
D = [64 + 8 * j for j in range(8)]
sX_IDX, sX_RAW, sWS, sDINV, sESRC, sOUT, sW1, sW2 = 32, 36, 40, 44, 48, 52, 56, 60
M = [64 + 2 * i for i in range(8)]
P = [80 + 2 * i for i in range(8)]
sT, sV, sJ, sFLAG, sRND = 96, 97, 98, 99, 100
sNODE0 = 4
sH, sHW = 5, 6
sTMP = 7

def mfma(a, d, A, B, Cz=False):
    c = "0" if Cz else "v[%d:%d]" % (d, d + 3)
    a("v_mfma_f32_16x16x32_bf16 v[%d:%d], v[%d:%d], v[%d:%d], %s" % (d, d + 3, A, A + 3, B, B + 3, c))

def trfrag(a, dst, base, s, t, areg=None):
    areg = vTR if areg is None else areg
    off = base + 32 * s * 144 + 64 * (t >> 1) + 8 * (t & 1)
    a("ds_read_b64_tr_b16 v[%d:%d], v%d offset:%d" % (dst, dst + 1, areg, off))
    a("ds_read_b64_tr_b16 v[%d:%d], v%d offset:%d" % (dst + 2, dst + 3, areg, off + 4 * 144))

def gen_B(a):
    kstart(a, KB)
    a("s_cmp_ge_u32 s2, %d" % NB)
    a("s_cbranch_scc1 B_END")
    if STAMPS:
        a("s_memrealtime s[86:87]")
        a("s_waitcnt lgkmcnt(0)")
    if DELAY:
        a("s_mov_b32 s30, %d" % DELAY)
        a.label("B_DELAY")
        a("s_sub_u32 s30, s30, 1")
        a("s_cmp_lg_u32 s30, 0")
        a("s_cbranch_scc1 B_DELAY")
    load_kernargs(a)
    a("v_and_b32 v%d, 63, v0" % vL)
    a("v_readfirstlane_b32 s3, v0")
    a("v_and_b32 v%d, 3, v0" % vT0)
    a("v_lshlrev_b32 v%d, 4, v%d" % (vF16, vT0))
    a("s_lshr_b32 s3, s3, 6")
    a("v_and_b32 v%d, 15, v0" % vT1)
    a("v_lshrrev_b32 v%d, 4, v%d" % (vT2, vL))
    a("v_lshl_add_u32 v%d, v%d, 2, v%d" % (vPAB, vT1, vT2))
    a("v_lshlrev_b32 v%d, 2, v%d" % (vPAB, vPAB))
    a("v_lshrrev_b32 v%d, 2, v%d" % (vT3, vL))
    a("v_lshl_add_u32 v%d, v%d, 4, v%d" % (vPBA, vT0, vT3))
    a("v_lshlrev_b32 v%d, 2, v%d" % (vPBA, vPBA))
    a("v_and_b32 v%d, 3, v%d" % (vTR, vT3))
    a("v_lshl_add_u32 v%d, v%d, 3, v%d" % (vTR, vT2, vTR))
    a("v_mul_u32_u24 v%d, 144, v%d" % (vTR, vTR))
    a("v_add_u32 v%d, v%d, v%d" % (vTR, vTR, vF16))
    a("v_lshrrev_b32 v%d, 2, v%d" % (vWKa, vT1))
    a("v_lshlrev_b32 v%d, 3, v%d" % (vWKa, vWKa))
    a("v_and_b32 v%d, 3, v%d" % (vZ, vT1))
    a("v_add_u32 v%d, v%d, v%d" % (vWKa, vWKa, vZ))
    a("v_mul_u32_u24 v%d, 144, v%d" % (vWKa, vWKa))
    a("v_lshl_add_u32 v%d, v%d, 4, v%d" % (vWKa, vT2, vWKa))
    a("v_add_u32 v%d, %d, v%d" % (vWKa, L_WK, vWKa))
    a("s_lshl_b32 s30, s3, 4")
    a("v_add_u32 v%d, s30, v%d" % (vNL, vT3))
    a("v_min_u32 v%d, %d, v%d" % (vNL, BS, vNL))
    a("v_add_u32 v%d, s30, v%d" % (vNLB, vT1))
    a("v_min_u32 v%d, %d, v%d" % (vNLB, BS, vNLB))
    a("v_mov_b32 v%d, 1" % vOne)
    a("v_mov_b32 v%d, 0" % vZ)
    for j in range(8):
        a("v_mov_b32 v%d, v%d" % (EP[j] + 1, vF16))
    a("s_waitcnt lgkmcnt(0)")
    srd(a, sWS, 28, 29, WS_USED)
    a("v_lshlrev_b32 v%d, 4, v0" % vT0)
    a("s_lshl_b32 s30, s2, 15")
    a("s_add_u32 s30, s30, %d" % WS_SLOTS)
    a("s_add_u32 s31, s30, 16384")
    a("buffer_load_dwordx4 v[%d:%d], v%d, s[%d:%d], s30 offen" % (E[0], E[3], vT0, sWS, sWS + 3))
    a("buffer_load_dwordx4 v[%d:%d], v%d, s[%d:%d], s31 offen" % (E[4], E[7], vT0, sWS, sWS + 3))
    srd(a, sX_IDX, 4, 5, N, stride=128)
    srd(a, sX_RAW, 4, 5, N * 128)
    srd(a, sDINV, 14, 15, N * 2)
    srd(a, sESRC, 10, 11, N * 16)
    srd(a, sOUT, 24, 25, N * 128)
    a.c("weights: waves 0-7 wq / wl ; waves 8-15 wk / wv")
    a("s_cmp_lt_u32 s3, 8")
    a("s_cselect_b32 s%d, s18, s20" % sW1)
    a("s_cselect_b32 s%d, s19, s21" % (sW1 + 1))
    a("s_cselect_b32 s%d, s16, s22" % sW2)
    a("s_cselect_b32 s%d, s17, s23" % (sW2 + 1))
    a("s_mov_b32 s8, %d\ns_mov_b32 s9, %d" % (L_WK, L_WV))
    a("s_cselect_b32 s8, %d, s8" % L_WQ)
    a("s_cselect_b32 s9, %d, s9" % L_WL)
    a("s_and_b32 s%d, s%d, 0xffff" % (sW1 + 1, sW1 + 1))
    a("s_and_b32 s%d, s%d, 0xffff" % (sW2 + 1, sW2 + 1))
    a("s_mov_b32 s%d, 8192\ns_mov_b32 s%d, 0x20000" % (sW1 + 2, sW1 + 3))
    a("s_mov_b32 s%d, 8192\ns_mov_b32 s%d, 0x20000" % (sW2 + 2, sW2 + 3))
    a("s_mul_i32 s%d, s2, %d" % (sNODE0, BS))
    a("s_lshl_b32 s30, s3, 4")
    a("s_add_u32 s%d, s%d, s30" % (sNODE0, sNODE0))
    a("s_mov_b32 s%d, %d" % (sH, H))
    a("s_mov_b32 s%d, %d" % (sHW, N - H))
    a("s_mov_b32 s%d, 0\ns_mov_b32 s12, 0" % sRND)
    if STAMPS:
        a("s_mov_b32 s14, s86"); _st["n"] = 1
    stamp(a)
    WA, WB = 112, 116
    XO = 96
    vES = 40
    a("v_and_b32 v%d, 511, v0" % vT1)
    a("v_lshlrev_b32 v%d, 4, v%d" % (vT2, vT1))
    a("s_cmp_ge_u32 s3, 13")
    a("s_cbranch_scc1 B_HELP0")
    a("v_lshlrev_b32 v%d, 2, v%d" % (vT3, vL))
    a("s_lshl_b32 s30, s%d, 4" % sNODE0)
    a("buffer_load_dword v%d, v%d, s[%d:%d], s30 offen" % (vES, vT3, sESRC, sESRC + 3))
    a("buffer_load_dwordx4 v[%d:%d], v%d, s[%d:%d], 0 offen" % (WA, WA + 3, vT2, sW1, sW1 + 3))
    a("buffer_load_dwordx4 v[%d:%d], v%d, s[%d:%d], 0 offen" % (WB, WB + 3, vT2, sW2, sW2 + 3))
    a("v_lshrrev_b32 v%d, 2, v%d" % (vT3, vL))
    a("v_lshl_add_u32 v%d, v%d, 7, v%d" % (vT3, vT3, vF16))
    a("s_lshl_b32 s30, s%d, 7" % sNODE0)
    a("buffer_load_dwordx4 v[%d:%d], v%d, s[%d:%d], s30 offen" % (XO, XO + 3, vT3, sX_RAW, sX_RAW + 3))
    a("buffer_load_dwordx4 v[%d:%d], v%d, s[%d:%d], s30 offen offset:64" % (XO + 4, XO + 7, vT3, sX_RAW, sX_RAW + 3))
    a("s_branch B_INIT")
    a.label("B_HELP0")
    a("buffer_load_dwordx4 v[%d:%d], v%d, s[%d:%d], 0 offen" % (WA, WA + 3, vT2, sW1, sW1 + 3))
    a("buffer_load_dwordx4 v[%d:%d], v%d, s[%d:%d], 0 offen" % (WB, WB + 3, vT2, sW2, sW2 + 3))
    a("v_lshlrev_b32 v%d, 4, v%d" % (vT3, vL))
    a("s_sub_u32 s30, s3, 13")
    a("s_mov_b32 s31, 27")
    a.label("B_DMA1")
    a("s_min_u32 s10, s30, 79")
    a("s_lshl_b32 s10, s10, 10")
    a("s_add_u32 m0, s10, %d" % L_DINV)
    a("s_add_u32 s30, s30, 3")
    a("buffer_load_dwordx4 v%d, s[%d:%d], s10 offen lds" % (vT3, sDINV, sDINV + 3))
    a("s_sub_u32 s31, s31, 1")
    a("s_cmp_lg_u32 s31, 0")
    a("s_cbranch_scc1 B_DMA1")
    a.label("B_INIT")
    a("v_mov_b32 v120, 0x%x" % (SENT | (SENT << 16)))
    a("v_mov_b32 v121, v120\nv_mov_b32 v122, v120\nv_mov_b32 v123, v120")
    a("v_cmp_gt_u32 vcc, 992, v0")
    a("s_and_saveexec_b64 s[30:31], vcc")
    a("ds_write_b128 v%d, v[120:123] offset:%d" % (vT0, L_LISTS))
    a("s_mov_b64 exec, s[30:31]")
    a("v_cmp_gt_u32 vcc, 256, v0")
    a("s_and_saveexec_b64 s[30:31], vcc")
    a("v_lshlrev_b32 v%d, 2, v0" % vT3)
    a("ds_write_b32 v%d, v%d offset:%d" % (vT3, vZ, L_CNT))
    a("s_mov_b64 exec, s[30:31]")
    a("v_lshrrev_b32 v124, 3, v%d" % vT1)
    a("v_mul_u32_u24 v124, 144, v124")
    a("v_and_b32 v125, 7, v%d" % vT1)
    a("v_lshl_add_u32 v124, v125, 4, v124")
    a("v_add_u32 v125, s9, v124")
    a("v_add_u32 v124, s8, v124")
    a("s_cmp_ge_u32 s3, 13")
    a("s_cbranch_scc1 B_HELP1")
    a("s_waitcnt vmcnt(2)")
    a("ds_write_b128 v124, v[%d:%d]" % (WA, WA + 3))
    a("ds_write_b128 v125, v[%d:%d]" % (WB, WB + 3))
    a.c("attention gathers")
    for j in range(4):
        a("v_mov_b32_dpp v%d, v%d quad_perm:[%d,%d,%d,%d] row_mask:0xf bank_mask:0xf" % (EP[j], vES, j, j, j, j))
    for j in range(4):
        a("buffer_load_dwordx4 v[%d:%d], v[%d:%d], s[%d:%d], 0 idxen offen" % (D[j], D[j] + 3, EP[j], EP[j] + 1, sX_IDX, sX_IDX + 3))
        a("buffer_load_dwordx4 v[%d:%d], v[%d:%d], s[%d:%d], 0 idxen offen offset:64" % (D[j] + 4, D[j] + 7, EP[j], EP[j] + 1, sX_IDX, sX_IDX + 3))
    a("s_branch B_BAR1")
    a.label("B_HELP1")
    a("s_waitcnt vmcnt(27)")
    a("ds_write_b128 v124, v[%d:%d]" % (WA, WA + 3))
    a("ds_write_b128 v125, v[%d:%d]" % (WB, WB + 3))
    a.label("B_BAR1")
    a("s_waitcnt lgkmcnt(0)")
    stamp(a)
    a("s_barrier")
    stamp(a)
    a("s_cmp_ge_u32 s3, 13")
    a("s_cbranch_scc1 B_BUILD_LO")
    XB, FR, D1, QB, QA = 104, 112, 24, 96, 96
    a("s_waitcnt vmcnt(8)")
    a("v_add_u32 v%d, %d, v%d" % (vT0, L_WQ, vTR))
    for k in range(8):
        a("ds_bpermute_b32 v%d, v%d, v%d" % (XB + k, vPAB, XO + k))
    for t in range(4):
        if t == 0:
            trfrag(a, FR, 0, 0, 0, vT0); trfrag(a, FR + 4, 0, 1, 0, vT0)
        if t < 3:
            o = FR + 8 * ((t + 1) & 1)
            trfrag(a, o, 0, 0, t + 1, vT0); trfrag(a, o + 4, 0, 1, t + 1, vT0)
            a("s_waitcnt lgkmcnt(4)")
        else:
            a("s_waitcnt lgkmcnt(0)")
        c = FR + 8 * (t & 1)
        mfma(a, D1 + 4 * t, c, XB, Cz=True)
        mfma(a, D1 + 4 * t, c + 4, XB + 4)
    def wkfrag(dst, ti, s):
        a("ds_read_b128 v[%d:%d], v%d offset:%d" % (dst, dst + 3, vWKa, (32 * (ti >> 1) + 4 * (ti & 1)) * 144 + 64 * s))
    a("s_nop 7")
    for t in range(4):
        a("v_cvt_pk_bf16_f32 v%d, v%d, v%d" % (QB + 2 * t, D1 + 4 * t, D1 + 4 * t + 1))
        a("v_cvt_pk_bf16_f32 v%d, v%d, v%d" % (QB + 2 * t + 1, D1 + 4 * t + 2, D1 + 4 * t + 3))
    for t in range(4):
        if t == 0:
            wkfrag(FR, 0, 0); wkfrag(FR + 4, 0, 1)
        if t < 3:
            o = FR + 8 * ((t + 1) & 1)
            wkfrag(o, t + 1, 0); wkfrag(o + 4, t + 1, 1)
            a("s_waitcnt lgkmcnt(2)")
        else:
            a("s_waitcnt lgkmcnt(0)")
        c = FR + 8 * (t & 1)
        mfma(a, D1 + 4 * t, c, QB, Cz=True)
        mfma(a, D1 + 4 * t, c + 4, QB + 4)
    a("s_nop 7")
    QPB = XB
    for t in range(4):
        a("v_cvt_pk_bf16_f32 v%d, v%d, v%d" % (QPB + 2 * t, D1 + 4 * t, D1 + 4 * t + 1))
        a("v_cvt_pk_bf16_f32 v%d, v%d, v%d" % (QPB + 2 * t + 1, D1 + 4 * t + 2, D1 + 4 * t + 3))
    for k in range(8):
        a("ds_bpermute_b32 v%d, v%d, v%d" % (QA + k, vPBA, QPB + k))
    AI = [112 + i for i in range(8)]
    RI = [120 + i for i in range(8)]
    a.label("B_BUILD_LO")
    stamp(a)
    a.c("slots must have arrived: tile waves waited vmcnt(8) after older loads; helpers waited vmcnt(27); reload path waits itself")
    a("s_mov_b32 s%d, 0" % sFLAG)
    for i in range(8):
        a("v_lshlrev_b32_sdwa v%d, 2, v%d dst_sel:DWORD dst_unused:UNUSED_PAD src0_sel:DWORD src1_sel:BYTE_2" % (AI[i], E[i]))
    def build_pass(hi):
        order = [3, 7, 2, 6, 1, 5, 0, 4] if hi else [0, 4, 1, 5, 2, 6, 3, 7]
        for i in order:
            a("v_and_b32 v%d, 0xffff, v%d" % (vT0, E[i]))
            if hi:
                a("v_subrev_u32 v%d, s%d, v%d" % (vT0, sH, vT0))
                a("v_cmp_gt_u32 s[%d:%d], s%d, v%d" % (M[i], M[i] + 1, sHW, vT0))
            else:
                a("v_cmp_gt_u32 s[%d:%d], s%d, v%d" % (M[i], M[i] + 1, sH, vT0))
        for i in order:
            a("s_mov_b64 exec, s[%d:%d]" % (M[i], M[i] + 1))
            a("ds_add_rtn_u32 v%d, v%d, v%d offset:%d" % (RI[i], AI[i], vOne, L_CNT))
        a("s_mov_b64 exec, -1")
        for n, i in enumerate(order):
            a("s_mov_b64 exec, s[%d:%d]" % (M[i], M[i] + 1))
            a("s_waitcnt lgkmcnt(7)")
            a("v_cmp_gt_u32 vcc, %d, v%d" % (CAP, RI[i]))
            a("v_lshlrev_b32 v%d, 1, v%d" % (vT0, RI[i]))
            a("v_mad_u32_u24 v%d, v%d, 20, v%d" % (vT0, AI[i], vT0))
            if hi:
                a("s_andn2_b64 s[30:31], exec, vcc")
                a("s_or_b64 s[%d:%d], s[%d:%d], s[30:31]" % (P[i], P[i] + 1, P[i], P[i] + 1))
            else:
                a("s_andn2_b64 s[%d:%d], exec, vcc" % (P[i], P[i] + 1))
            a("s_and_b64 exec, exec, vcc")
            a("ds_write_b16 v%d, v%d offset:%d" % (vT0, E[i], L_LISTS))
        a("s_mov_b64 exec, -1")
    build_pass(False)
    a("s_waitcnt lgkmcnt(0)")
    stamp(a)
    a("s_barrier")
    stamp(a)
    a("s_cmp_lt_u32 s3, 13")
    a("s_cbranch_scc1 B_BUILD_HI")
    a("s_cmp_lg_u32 s%d, 0" % sRND)
    a("s_cbranch_scc1 B_BUILD_HI")
    a("v_lshlrev_b32 v%d, 4, v%d" % (vT3, vL))
    a("s_sub_u32 s30, s3, 13")
    a("s_add_u32 s30, s30, 80")
    for k in range(6):
        a("s_lshl_b32 s10, s30, 10")
        a("s_add_u32 m0, s10, %d" % L_DINV)
        a("s_add_u32 s30, s30, 3")
        a("buffer_load_dwordx4 v%d, s[%d:%d], s10 offen lds" % (vT3, sDINV, sDINV + 3))
    a.label("B_BUILD_HI")
    build_pass(True)
    a("s_or_b64 s[30:31], s[%d:%d], s[%d:%d]" % (P[0], P[0] + 1, P[1], P[1] + 1))
    for i in range(2, 8):
        a("s_or_b64 s[30:31], s[30:31], s[%d:%d]" % (P[i], P[i] + 1))
    a("s_cmp_lg_u64 s[30:31], 0")
    a("s_cselect_b32 s%d, 1, 0" % sFLAG)
    a("s_cmp_lg_u32 s%d, 0" % sRND)
    a("s_cbranch_scc1 B_NOFULL")
    for (i, j) in ((1, 2), (5, 6)):
        a("v_and_b32 v%d, 0xffff, v%d" % (vT0, E[i]))
        a("v_and_b32 v%d, 0xffff, v%d" % (vT1, E[j]))
        a("v_max_u32 v%d, v%d, v%d" % (vT0, vT0, vT1))
        a("v_cmp_gt_u32 vcc, %d, v%d" % (N, vT0))
        a("s_bcnt1_i32_b64 s30, vcc")
        a("s_cmp_ge_u32 s30, 8")
        a("s_cselect_b32 s30, 2, 0")
        a("s_or_b32 s%d, s%d, s30" % (sFLAG, sFLAG))
    a.label("B_NOFULL")
    a("s_cmp_eq_u32 s%d, 0" % sFLAG)
    a("s_cbranch_scc1 B_NOFLAG")
    a("v_mov_b32 v%d, s%d" % (vT0, sFLAG))
    a("ds_or_b32 v%d, v%d offset:%d" % (vZ, vT0, L_FLAG))
    a.label("B_NOFLAG")
    stamp(a)
    a("s_cmp_ge_u32 s3, 13")
    a("s_cbranch_scc1 B_BAR3")
    a("s_cmp_lg_u32 s%d, 0" % sRND)
    a("s_cbranch_scc1 B_BAR3")
    a("s_waitcnt vmcnt(0) lgkmcnt(0)")
    EE = [40, 41, 42, 43]
    for j in range(4):
        a("v_dot2_f32_bf16 v%d, v%d, v%d, 0" % (EE[j], D[j], QA))
    for k in range(1, 8):
        for j in range(4):
            a("v_dot2c_f32_bf16 v%d, v%d, v%d" % (EE[j], D[j] + k, QA + k))
    a("s_nop 1")
    for j in range(4):
        a("v_add_f32_dpp v%d, v%d, v%d quad_perm:[1,0,3,2] row_mask:0xf bank_mask:0xf" % (EE[j], EE[j], EE[j]))
    a("s_nop 0")
    for j in range(4):
        a("v_add_f32_dpp v%d, v%d, v%d quad_perm:[2,3,0,1] row_mask:0xf bank_mask:0xf" % (EE[j], EE[j], EE[j]))
    import math
    c = 0.125 * math.log2(math.e)
    import struct
    cbits = struct.unpack("<I", struct.pack("<f", c))[0]
    for j in range(4):
        a("v_mul_f32 v%d, 0x%x, v%d" % (EE[j], cbits, EE[j]))
    for j in range(4):
        a("v_exp_f32 v%d, v%d" % (EE[j], EE[j]))
    a("s_nop 0")
    a("v_add_f32 v44, v%d, v%d" % (EE[0], EE[1]))
    a("v_add_f32 v45, v%d, v%d" % (EE[2], EE[3]))
    a("v_add_f32 v44, v44, v45")
    a("v_add_f32 v44, 0x%x, v44" % struct.unpack("<I", struct.pack("<f", 1e-9))[0])
    a("v_rcp_f32 v44, v44")
    a("s_nop 0")
    for j in range(4):
        a("v_mul_f32 v%d, v%d, v44" % (EE[j], EE[j]))
    AL = [44, 45, 46, 47]; AH = [104, 105, 106, 107]
    for j in range(4):
        a("v_cvt_pk_bf16_f32 v%d, v%d, v%d" % (AL[j], EE[j], vZ))
        a("v_cvt_pk_bf16_f32 v%d, v%d, v%d" % (AH[j], vZ, EE[j]))
    for k in range(8):
        a("v_dot2_f32_bf16 v%d, v%d, v%d, 0" % (ACC[2 * k], D[0] + k, AL[0]))
        a("v_dot2_f32_bf16 v%d, v%d, v%d, 0" % (ACC[2 * k + 1], D[0] + k, AH[0]))
    for j in range(1, 4):
        for k in range(8):
            a("v_dot2c_f32_bf16 v%d, v%d, v%d" % (ACC[2 * k], D[j] + k, AL[j]))
            a("v_dot2c_f32_bf16 v%d, v%d, v%d" % (ACC[2 * k + 1], D[j] + k, AH[j]))
    YB = 96
    for k in range(8):
        a("v_cvt_pk_bf16_f32 v%d, v%d, v%d" % (YB + k, ACC[2 * k], ACC[2 * k + 1]))
    a("v_and_b32 v%d, 7, v%d" % (vT0, vNL))
    a("v_lshlrev_b32 v%d, 4, v%d" % (vT0, vT0))
    a("v_xor_b32 v%d, v%d, v%d" % (vT0, vT0, vF16))
    a("v_lshl_add_u32 v%d, v%d, 7, v%d" % (vT0, vNL, vT0))
    a("v_xor_b32 v%d, 64, v%d" % (vT1, vT0))
    a("ds_write_b128 v%d, v[%d:%d] offset:%d" % (vT0, YB, YB + 3, L_Y))
    a("ds_write_b128 v%d, v[%d:%d] offset:%d" % (vT1, YB + 4, YB + 7, L_Y))
    for k in range(16):
        a("v_mov_b32 v%d, 0" % ACC[k])
    a.label("B_BAR3")
    a("s_waitcnt vmcnt(0) lgkmcnt(0)")
    stamp(a)
    a("s_barrier")
    stamp(a)
    a("ds_read_b32 v%d, v%d offset:%d" % (vT0, vZ, L_FLAG))
    a("v_lshlrev_b32 v%d, 2, v%d" % (vT1, vNL))
    a("ds_read_b32 v%d, v%d offset:%d" % (vT1, vT1, L_CNT))
    a("s_waitcnt lgkmcnt(0)")
    a("v_readfirstlane_b32 s%d, v%d" % (sFLAG, vT0))
    a("s_nop 0")
    a("s_and_b32 s30, s%d, 1" % sFLAG)
    a("s_cbranch_scc0 B_NOSPILL")
    a.c("rare: keep only pending entries and spill them")
    a("v_mov_b32 v%d, 0x00ffffff" % vT2)
    for i in range(8):
        a("v_cndmask_b32 v%d, v%d, v%d, s[%d:%d]" % (E[i], vT2, E[i], P[i], P[i] + 1))
    a("v_lshlrev_b32 v%d, 4, v0" % vT2)
    a("s_lshl_b32 s30, s2, 15")
    a("s_add_u32 s30, s30, %d" % WS_SPILL)
    a("s_add_u32 s31, s30, 16384")
    a("buffer_store_dwordx4 v[%d:%d], v%d, s[%d:%d], s30 offen" % (E[0], E[3], vT2, sWS, sWS + 3))
    a("buffer_store_dwordx4 v[%d:%d], v%d, s[%d:%d], s31 offen" % (E[4], E[7], vT2, sWS, sWS + 3))
    a("s_waitcnt vmcnt(0)")
    a.label("B_NOSPILL")
    a("s_cmp_ge_u32 s3, 13")
    a("s_cbranch_scc1 B_GDONE")
    a("v_min_u32 v%d, %d, v%d" % (vT1, CAP, vT1))
    a("s_nop 1")
    a("v_max_u32_dpp v%d, v%d, v%d row_shr:4 row_mask:0xf bank_mask:0xf" % (vT1, vT1, vT1))
    a("s_nop 1")
    a("v_max_u32_dpp v%d, v%d, v%d row_shr:8 row_mask:0xf bank_mask:0xf" % (vT1, vT1, vT1))
    a("s_nop 1")
    a("v_readlane_b32 s8, v%d, 15\nv_readlane_b32 s9, v%d, 31\nv_readlane_b32 s10, v%d, 47\nv_readlane_b32 s11, v%d, 63" % (vT1, vT1, vT1, vT1))
    a("s_nop 0")
    a("s_max_u32 s8, s8, s9\ns_max_u32 s10, s10, s11\ns_max_u32 s8, s8, s10")
    a("s_max_u32 s%d, s8, 8" % sT)
    a("s_sub_u32 s%d, 0, s%d" % (sJ, sT))
    a("s_and_b32 s%d, s%d, 7" % (sJ, sJ))
    a("v_mul_u32_u24 v%d, 80, v%d" % (vLB, vNL))
    a("s_lshl_b32 s8, s%d, 1" % sJ)
    a("s_sub_u32 s8, %d, s8" % L_LISTS)
    a("v_add_u32 v%d, s8, v%d" % (vLB, vLB))
    for j in range(8):
        a("s_cmp_gt_u32 s%d, %d" % (sJ, j))
        a("s_cselect_b32 s9, 16, 0")
        a("v_add_u32 v%d, s9, v%d" % (vT0, vLB))
        a("ds_read_u16 v%d, v%d offset:%d" % (EP[j], vT0, 2 * j))
    a("s_mov_b32 s%d, 0" % sV)
    a("s_waitcnt lgkmcnt(0)")
    stamp(a)
    for j in range(1, 8):
        a("s_cmp_eq_u32 s%d, %d" % (sJ, j))
        a("s_cbranch_scc1 B_POS%d" % j)
    def consume(j):
        a("v_lshlrev_b32 v%d, 16, v%d" % (vT0, S[j]))
        for k in range(8):
            a("v_dot2c_f32_bf16 v%d, v%d, v%d" % (ACC[2 * k], D[j] + k, S[j]))
        for k in range(8):
            a("v_dot2c_f32_bf16 v%d, v%d, v%d" % (ACC[2 * k + 1], D[j] + k, vT0))
    for j in range(8):
        a.label("B_POS%d" % j)
        a("s_cmp_lt_u32 s%d, 8" % sV)
        a("s_cbranch_scc1 B_ISS%d" % j)
        a("s_waitcnt vmcnt(14) lgkmcnt(14)")
        consume(j)
        a.label("B_ISS%d" % j)
        a("v_lshlrev_b32 v%d, 1, v%d" % (vT1, EP[j]))
        a("buffer_load_dwordx4 v[%d:%d], v[%d:%d], s[%d:%d], 0 idxen offen" % (D[j], D[j] + 3, EP[j], EP[j] + 1, sX_IDX, sX_IDX + 3))
        a("buffer_load_dwordx4 v[%d:%d], v[%d:%d], s[%d:%d], 0 idxen offen offset:64" % (D[j] + 4, D[j] + 7, EP[j], EP[j] + 1, sX_IDX, sX_IDX + 3))
        a("ds_read_u16 v%d, v%d offset:%d" % (S[j], vT1, L_DINV))
        a("ds_read_u16 v%d, v%d offset:%d" % (EP[j], vLB, 16 + 2 * j))
        a("s_add_u32 s%d, s%d, 1" % (sV, sV))
    a("v_add_u32 v%d, 16, v%d" % (vLB, vLB))
    a("s_cmp_lt_u32 s%d, s%d" % (sV, sT))
    a("s_cbranch_scc1 B_POS0")
    a("s_waitcnt lgkmcnt(0)")
    for j in range(8):
        a("s_waitcnt vmcnt(%d)" % (14 - 2 * j))
        consume(j)
    a.label("B_GDONE")
    stamp(a)
    a("s_or_b32 s30, s%d, s12" % sFLAG)
    a("s_cbranch_scc1 B_RARE")
    a.label("B_EPI")
    a("s_cmp_ge_u32 s3, 13")
    a("s_cbranch_scc1 %s" % ("B_DUMP" if STAMPS else "B_END"))
    AG, AGB, YBB, FR, DO, OB, OA = 96, 104, 112, 64, 80, 96, 104
    a("s_mul_i32 s8, s2, %d" % BS)
    a("v_add_u32 v%d, s8, v%d" % (vT2, vNL))
    a("v_min_u32 v%d, %d, v%d" % (vT0, N, vT2))
    a("v_lshlrev_b32 v%d, 1, v%d" % (vT0, vT0))
    a("ds_read_u16 v%d, v%d offset:%d" % (vT0, vT0, L_DINV))
    a("v_lshrrev_b32 v%d, 4, v%d" % (vT1, vL))
    a("v_and_b32 v%d, 7, v%d" % (vT3, vNLB))
    a("v_xor_b32 v%d, v%d, v%d" % (vT1, vT1, vT3))
    a("v_lshlrev_b32 v%d, 4, v%d" % (vT1, vT1))
    a("v_lshl_add_u32 v%d, v%d, 7, v%d" % (vT1, vNLB, vT1))
    a("v_xor_b32 v%d, 64, v%d" % (vT3, vT1))
    a("ds_read_b128 v[%d:%d], v%d offset:%d" % (YBB, YBB + 3, vT1, L_Y))
    a("ds_read_b128 v[%d:%d], v%d offset:%d" % (YBB + 4, YBB + 7, vT3, L_Y))
    a("s_waitcnt lgkmcnt(2)")
    a("v_lshlrev_b32 v%d, 16, v%d" % (vT0, vT0))
    for k in range(16):
        a("v_mul_f32 v%d, v%d, v%d" % (ACC[k], ACC[k], vT0))
    for k in range(8):
        a("v_cvt_pk_bf16_f32 v%d, v%d, v%d" % (AG + k, ACC[2 * k], ACC[2 * k + 1]))
    for k in range(8):
        a("ds_bpermute_b32 v%d, v%d, v%d" % (AGB + k, vPAB, AG + k))
    for t in range(4):
        o = FR if (t & 1) == 0 else 40
        trfrag(a, o, L_WL, 0, t); trfrag(a, o + 4, L_WL, 1, t)
        trfrag(a, o + 8, L_WV, 0, t); trfrag(a, o + 12, L_WV, 1, t)
        a("s_waitcnt lgkmcnt(0)")
        mfma(a, DO + 4 * t, o, AGB, Cz=True)
        mfma(a, DO + 4 * t, o + 4, AGB + 4)
        mfma(a, DO + 4 * t, o + 8, YBB)
        mfma(a, DO + 4 * t, o + 12, YBB + 4)
    a("s_nop 7")
    for t in range(4):
        a("v_cvt_pk_bf16_f32 v%d, v%d, v%d" % (OB + 2 * t, DO + 4 * t, DO + 4 * t + 1))
        a("v_cvt_pk_bf16_f32 v%d, v%d, v%d" % (OB + 2 * t + 1, DO + 4 * t + 2, DO + 4 * t + 3))
    for k in range(8):
        a("ds_bpermute_b32 v%d, v%d, v%d" % (OA + k, vPBA, OB + k))
    a("v_lshl_add_u32 v%d, v%d, 7, v%d" % (vT2, vT2, vF16))
    a("v_cmp_gt_u32 vcc, %d, v%d" % (BS, vNL))
    a("v_mov_b32 v%d, 0x7fffff00" % vT0)
    a("s_nop 0")
    a("v_cndmask_b32 v%d, v%d, v%d, vcc" % (vT2, vT0, vT2))
    a("s_waitcnt lgkmcnt(0)")
    sfx = " sc1" if B_SC1 else ""
    a("buffer_store_dwordx4 v[%d:%d], v%d, s[%d:%d], 0 offen%s" % (OA, OA + 3, vT2, sOUT, sOUT + 3, sfx))
    a("buffer_store_dwordx4 v[%d:%d], v%d, s[%d:%d], 0 offen offset:64%s" % (OA + 4, OA + 7, vT2, sOUT, sOUT + 3, sfx))
    if STAMPS:
        stamp(a)
        a("s_waitcnt vmcnt(0)")
        stamp(a)
        a.label("B_DUMP")
        stamp_dump(a, sWS, 1)
    a.label("B_END")
    a("s_endpgm")
    a.label("B_RARE")
    a("s_barrier")
    a("s_add_u32 s%d, s%d, 1" % (sRND, sRND))
    a("s_cmp_eq_u32 s%d, 1" % sRND)
    a("s_cbranch_scc0 B_R1")
    a("s_and_b32 s12, s%d, 2" % sFLAG)
    a("s_mov_b32 s13, 0")
    a.label("B_R1")
    a("s_and_b32 s30, s%d, 1" % sFLAG)
    a("s_cbranch_scc0 B_RNEXT")
    a.c("reload pending entries")
    a("v_lshlrev_b32 v%d, 4, v0" % vT2)
    a("s_lshl_b32 s30, s2, 15")
    a("s_add_u32 s30, s30, %d" % WS_SPILL)
    a("s_add_u32 s31, s30, 16384")
    a("buffer_load_dwordx4 v[%d:%d], v%d, s[%d:%d], s30 offen sc1" % (E[0], E[3], vT2, sWS, sWS + 3))
    a("buffer_load_dwordx4 v[%d:%d], v%d, s[%d:%d], s31 offen sc1" % (E[4], E[7], vT2, sWS, sWS + 3))
    a("s_branch B_RINIT")
    a.label("B_RNEXT")
    a("s_cmp_eq_u32 s12, 0")
    a("s_cbranch_scc1 B_EPI")
    a("s_cmp_lg_u32 s13, 0")
    a("s_cbranch_scc1 B_RHAVE")
    a.c("load the 256 overflow headers; every wave builds the same 4 masks s[14:21]")
    a("s_mov_b32 s13, 1")
    a("v_lshlrev_b32 v%d, 2, v%d" % (vT2, vL))
    a("s_mov_b32 s30, %d" % WS_HDR)
    a("buffer_load_dword v%d, v%d, s[%d:%d], s30 offen" % (112, vT2, sWS, sWS + 3))
    a("buffer_load_dword v%d, v%d, s[%d:%d], s30 offen offset:256" % (113, vT2, sWS, sWS + 3))
    a("buffer_load_dword v%d, v%d, s[%d:%d], s30 offen offset:512" % (114, vT2, sWS, sWS + 3))
    a("buffer_load_dword v%d, v%d, s[%d:%d], s30 offen offset:768" % (115, vT2, sWS, sWS + 3))
    a("s_waitcnt vmcnt(0)")
    for q in range(4):
        a("v_cmp_ne_u32 s[%d:%d], 0, v%d" % (14 + 2 * q, 15 + 2 * q, 112 + q))
    a.label("B_RHAVE")
    a.c("find next producer with overflow")
    for q in range(4):
        a("s_cmp_lg_u64 s[%d:%d], 0" % (14 + 2 * q, 15 + 2 * q))
        a("s_cbranch_scc1 B_RQ%d" % q)
    a("s_branch B_EPI")
    for q in range(4):
        a.label("B_RQ%d" % q)
        a("s_ff1_i32_b64 s22, s[%d:%d]" % (14 + 2 * q, 15 + 2 * q))
        a("s_bitset0_b64 s[%d:%d], s22" % (14 + 2 * q, 15 + 2 * q))
        a("s_add_u32 s22, s22, %d" % (64 * q))
        a("s_branch B_RGOT")
    a.label("B_RGOT")
    a.c("producer s22: load its count and list; keep entries of my bucket")
    a("s_lshl_b32 s30, s22, 2")
    a("s_add_u32 s30, s30, %d" % WS_HDR)
    a("buffer_load_dword v%d, v%d, s[%d:%d], s30 offen" % (vT3, vZ, sWS, sWS + 3))
    a("s_mul_i32 s30, s22, %d" % OVF_STRIDE)
    a("s_add_u32 s30, s30, %d" % WS_OVF)
    a("v_lshlrev_b32 v%d, 2, v0" % vT2)
    for k in range(4):
        a("s_add_u32 s31, s30, %d" % (4096 * k))
        a("buffer_load_dword v%d, v%d, s[%d:%d], s31 offen" % (E[k], vT2, sWS, sWS + 3))
    a("s_waitcnt vmcnt(0)")
    a("v_and_b32 v%d, 0xffffff, v%d" % (vT3, vT3))
    a("v_mov_b32 v%d, 0x00ffffff" % vT1)
    for k in range(4):
        a("v_add_u32 v%d, %d, v0" % (vT0, 1024 * k))
        a("v_cmp_lt_u32 vcc, v%d, v%d" % (vT0, vT3))
        a("v_lshrrev_b32 v%d, 24, v%d" % (vT0, E[k]))
        a("v_cmp_eq_u32 s[30:31], s2, v%d" % vT0)
        a("s_and_b64 vcc, vcc, s[30:31]")
        a("s_nop 0")
        a("v_cndmask_b32 v%d, v%d, v%d, vcc" % (E[k], vT1, E[k]))
    for k in range(4, 8):
        a("v_mov_b32 v%d, v%d" % (E[k], vT1))
    a.label("B_RINIT")
    a.c("re-init lists / counters / flag")
    a("v_mov_b32 v120, 0x%x" % (SENT | (SENT << 16)))
    a("v_mov_b32 v121, v120\nv_mov_b32 v122, v120\nv_mov_b32 v123, v120")
    a("v_lshlrev_b32 v%d, 4, v0" % vT0)
    a("v_cmp_gt_u32 vcc, 992, v0")
    a("s_and_saveexec_b64 s[30:31], vcc")
    a("ds_write_b128 v%d, v[120:123] offset:%d" % (vT0, L_LISTS))
    a("s_mov_b64 exec, s[30:31]")
    a("v_cmp_gt_u32 vcc, 256, v0")
    a("s_and_saveexec_b64 s[30:31], vcc")
    a("v_lshlrev_b32 v%d, 2, v0" % vT3)
    a("ds_write_b32 v%d, v%d offset:%d" % (vT3, vZ, L_CNT))
    a("s_mov_b64 exec, s[30:31]")
    a("s_waitcnt vmcnt(0) lgkmcnt(0)")
    a("s_barrier")
    a("s_branch B_BUILD_LO")

def main():
    a = Asm()
    header(a)
    gen_A(a)
    gen_B(a)
    a('.section .rodata,"a"')
    a(".p2align 6")
    kdesc(a, KA, 64, 96)
    a(".p2align 6")
    kdesc(a, KB, 128, 102)
    txt = a.text()
    out = sys.argv[1] if len(sys.argv) > 1 else "k2.s"
    open(out, "w").write(txt)
    pr = lint(txt)
    print("wrote", out, "lines", txt.count("\n"), "hazards", len(pr))

main()
```
